```python
import torch

def _softmax(x, axis=-1):
    return torch.softmax(x, dim=axis)
def _gelu(x):
    return torch.nn.functional.gelu(x, approximate="tanh")
def _silu(x):
    return torch.nn.functional.silu(x)
def _sigmoid(x):
    return torch.sigmoid(x)
def _layernorm(x, axis=-1, eps=1e-5):
    m = x.mean(dim=axis, keepdim=True)
    v = x.var(dim=axis, keepdim=True, unbiased=False)
    return (x - m) / torch.sqrt(v + eps)
def _scatter_add(tgt, idx, src, axis=0):
    return tgt.clone().index_add_(axis, idx, src)
def _segment_sum(src, seg, n):
    out = torch.zeros((n,) + src.shape[1:], dtype=src.dtype)
    return out.index_add_(0, seg, src)
def _pad(x, pw):
    flat = tuple(v for pair in reversed(pw) for v in pair)
    return torch.nn.functional.pad(x, flat)

kernel_name = 'interleave_layers__grouped_kv_mqa__sliding_block__prompt'

def setup_inputs():

    _w = (lambda a: (lambda t: t.to(torch.bfloat16) if t.is_floating_point() else t)(torch.as_tensor(a)))
    def _A_setup():
        B, S, D, H = 1, 2048, 640, 32
        Dh = D // H
        return {
            "x": _w((lambda *s: torch.randn(*s, dtype=torch.bfloat16) * 0.05)(B, S, D)),
            "wq": _w((lambda *s: torch.randn(*s, dtype=torch.bfloat16) * 0.05)(D, H * Dh)),
            "wk": _w((lambda *s: torch.randn(*s, dtype=torch.bfloat16) * 0.05)(D, Dh)),
            "wv": _w((lambda *s: torch.randn(*s, dtype=torch.bfloat16) * 0.05)(D, Dh)),
            "wo": _w((lambda *s: torch.randn(*s, dtype=torch.bfloat16) * 0.05)(H * Dh, D)),
        }
    _A_in = _A_setup()

    def _B_setup():
        B, S, D = 1, 2048, 640
        return {
            "x": _w((lambda *s: torch.randn(*s, dtype=torch.bfloat16) * 0.05)(B, S, D)),
            "wqkv": _w((lambda *s: torch.randn(*s, dtype=torch.bfloat16) * 0.05)(D, 3 * D)),
            "wo": _w((lambda *s: torch.randn(*s, dtype=torch.bfloat16) * 0.05)(D, D)),
        }
    _B_in = _B_setup()

    return {
        "A_x": _A_in["x"],
        "A_wq": _A_in["wq"],
        "A_wk": _A_in["wk"],
        "A_wv": _A_in["wv"],
        "A_wo": _A_in["wo"],
        "B_x": _B_in["x"],
        "B_wqkv": _B_in["wqkv"],
        "B_wo": _B_in["wo"],
    }

def reference(A_x, A_wq, A_wk, A_wv, A_wo, B_x, B_wqkv, B_wo):
    def _A_ref(x, wq, wk, wv, wo):
        B, S, D = x.shape
        H = 32
        Dh = D // H
        q = (lambda x, *d: x.permute(*d))((x @ wq).reshape(B, S, H, Dh), 0, 2, 1, 3)
        k = x @ wk
        v = x @ wv
        scores = torch.einsum("bhqd,bkd->bhqk", q, k) * (Dh ** -0.5)
        p = _softmax(scores, axis=-1)
        o = torch.einsum("bhqk,bkd->bhqd", p, v)
        return (lambda x, *d: x.permute(*d))(o, 0, 2, 1, 3).reshape(B, S, H * Dh) @ wo

    def _B_ref(x, wqkv, wo):
        B, S, D = x.shape
        H = 32; Dh = D // H; W = 256
        qkv = (lambda x, *d: x.permute(*d))((x @ wqkv).reshape(B, S, 3, H, Dh), 2, 0, 3, 1, 4)
        q, k, v = qkv[0], qkv[1], qkv[2]
        scores = torch.einsum("bhqd,bhkd->bhqk", q, k) * (Dh ** -0.5)
        idx = torch.arange(S)
        mask = (idx[:, None] - idx[None, :] >= 0) & (idx[:, None] - idx[None, :] < W)
        scores = torch.where(mask[None, None], scores, -1e9)
        p = _softmax(scores, axis=-1)
        o = torch.einsum("bhqk,bhkd->bhqd", p, v)
        return (lambda x, *d: x.permute(*d))(o, 0, 2, 1, 3).reshape(B, S, D) @ wo

    x = A_x
    x = x + _A_ref(_layernorm(x, axis=-1), A_wq, A_wk, A_wv, A_wo)
    x = x + _B_ref(_layernorm(x, axis=-1), B_wqkv, B_wo)
    x = x + _A_ref(_layernorm(x, axis=-1), A_wq, A_wk, A_wv, A_wo)
    x = x + _B_ref(_layernorm(x, axis=-1), B_wqkv, B_wo)
    return x
```

```python
def v(i, n=1):
    return f"v{i}" if n == 1 else f"v[{i}:{i+n-1}]"


def s(i, n=1):
    return f"s{i}" if n == 1 else f"s[{i}:{i+n-1}]"


class Kern:
    def __init__(self, name):
        self.name = name
        self.lines = []
        self.vmq = []
        self.lgq = []
        self.uid = 0

    def e(self, txt):
        self.lines.append(" " + txt)

    def label(self, name):
        self.lines.append(name + ":")

    def newlabel(self, stem):
        self.uid += 1
        return f"L_{self.name}_{stem}_{self.uid}"

    def n(self, cnt=1):
        while cnt > 0:
            c = min(cnt, 16)
            self.e(f"s_nop {c-1}")
            cnt -= c

    def vm(self, tag, txt):
        self.e(txt)
        self.vmq.append(tag)

    def lg(self, tag, txt):
        self.e(txt)
        self.lgq.append(tag)

    def _need(self, q, tags):
        idx = -1
        for i, t in enumerate(q):
            if t in tags:
                idx = i
        return idx

    def wait(self, vm=(), lg=()):
        if isinstance(vm, str):
            vm = (vm,)
        if isinstance(lg, str):
            lg = (lg,)
        parts = []
        iv = self._need(self.vmq, vm)
        if iv >= 0:
            nv = len(self.vmq) - 1 - iv
            nv = min(nv, 63)
            parts.append(f"vmcnt({nv})")
            self.vmq = self.vmq[iv + 1:]
        il = self._need(self.lgq, lg)
        if il >= 0:
            nl = len(self.lgq) - 1 - il
            assert nl <= 15, nl
            parts.append(f"lgkmcnt({nl})")
            self.lgq = self.lgq[il + 1:]
        if parts:
            self.e("s_waitcnt " + " ".join(parts))

    def wait_all(self):
        self.e("s_waitcnt vmcnt(0) lgkmcnt(0)")
        self.vmq = []
        self.lgq = []

    def wait_lg0(self):
        self.e("s_waitcnt lgkmcnt(0)")
        self.lgq = []

    def wait_vm0(self):
        self.e("s_waitcnt vmcnt(0)")
        self.vmq = []

    def text(self):
        return "\n".join(self.lines)
```

```python
import sys
sys.path.insert(0, "work")
from emit import Kern, v, s

S = 2048
D = 640
H = 32
DH = 20
ROWB = D * 2

KA_AX, KA_AWQ, KA_AWK, KA_AWV, KA_AWO, KA_BX, KA_BWQKV, KA_BWO, KA_OUT, KA_DBG, KA_WS = [8 * i for i in range(11)]

TILEB = 40 * 1024
WA_F = 0x000000
WOA_F = 0x100000
WQKV_F = 0x200000
WOB_F = 0x480000
CS_A = 0x580000
CS_B = 0x581000
X1 = 0x600000
X2 = 0x900000
X3 = 0xC00000
QIMG = 0x1000000
KIMG = 0x1400000
VIMG = 0x1800000
OBUF = 0x1C00000
XBYTES = S * ROWB
IMGB = 32 * 64 * 2048

LOG2E = 1.4426950408889634
QSCALE = LOG2E * (DH ** -0.5)

import struct


def f32bits(x):
    return struct.unpack("<I", struct.pack("<f", x))[0]


def srd(k, d, ptr, off, nbytes):
    k.e(f"s_add_u32 s{d}, s{ptr}, {off}")
    k.e(f"s_addc_u32 s{d+1}, s{ptr+1}, 0")
    k.e(f"s_mov_b32 s{d+2}, {nbytes}")
    k.e(f"s_mov_b32 s{d+3}, 0x00020000")


def gen_prep():
    k = Kern("prep_kernel")
    k.label("prep_kernel")
    k.e("v_lshrrev_b32 v1, 6, v0")
    k.n(1)
    k.e("v_readfirstlane_b32 s3, v1")
    k.e("s_lshl_b32 s4, s2, 2")
    k.e("s_add_u32 s3, s3, s4")
    k.e("s_cmp_ge_u32 s3, 122")
    end = "L_prep_end"
    k.e(f"s_cbranch_scc1 {end}")
    k.e(f"s_load_dwordx2 s[4:5], s[0:1], {KA_WS}")
    def sel(lbl_next, lim, ka, N, first, dst, cs):
        k.e(f"s_cmp_ge_u32 s3, {lim}")
        k.e(f"s_cbranch_scc1 {lbl_next}")
        k.e(f"s_load_dwordx2 s[6:7], s[0:1], {ka}")
        k.e(f"s_mov_b32 s8, {N}")
        k.e(f"s_sub_u32 s9, s3, {first}")
        k.e(f"s_mov_b32 s10, {dst}")
        k.e(f"s_mov_b32 s11, {cs}")
        k.e("s_branch L_prep_sel_done")
        k.label(lbl_next)
    sel("L_prep_s1", 20, KA_AWQ, 640, 0, WA_F, CS_A)
    sel("L_prep_s2", 21, KA_AWK, 20, 0, WA_F, CS_A)
    sel("L_prep_s3", 22, KA_AWV, 20, 0, WA_F, CS_A)
    sel("L_prep_s4", 42, KA_AWO, 640, 22, WOA_F, -1)
    sel("L_prep_s5", 102, KA_BWQKV, 1920, 42, WQKV_F, CS_B)
    sel("L_prep_s6", 122, KA_BWO, 640, 102, WOB_F, -1)
    k.label("L_prep_sel_done")
    k.wait_lg0()
    k.e("s_lshl_b32 s12, s9, 5")
    k.e("s_cmp_eq_u32 s8, 20")
    k.e("s_cselect_b32 s12, 0, s12")
    k.e("s_mov_b32 s16, s6")
    k.e("s_mov_b32 s17, s7")
    k.e("s_mul_i32 s18, s8, 1280")
    k.e("s_mov_b32 s19, 0x00020000")
    k.e(f"s_mul_i32 s13, s9, {TILEB}")
    k.e("s_add_u32 s13, s13, s10")
    k.e("s_add_u32 s20, s4, s13")
    k.e("s_addc_u32 s21, s5, 0")
    k.e(f"s_mov_b32 s22, {TILEB}")
    k.e("s_mov_b32 s23, 0x00020000")
    k.e("v_and_b32 v1, 31, v0")
    k.e("v_add_u32 v1, s12, v1")
    k.e("v_bfe_u32 v2, v0, 5, 1")
    k.e("v_lshlrev_b32 v2, 3, v2")
    k.e("v_mul_lo_u32 v2, v2, s8")
    k.e("v_add_u32 v2, v2, v1")
    k.e("v_lshlrev_b32 v2, 1, v2")
    k.e("v_cmp_gt_u32 vcc, s8, v1")
    k.e("v_mov_b32 v3, 0x7fffff00")
    k.n(1)
    k.e("v_cndmask_b32 v2, v3, v2, vcc")
    k.e("s_lshl_b32 s14, s8, 1")
    k.e("s_mov_b32 s15, 0")
    R0 = 32
    k.e("v_and_b32 v4, 63, v0")
    k.e("v_lshlrev_b32 v4, 4, v4")
    k.e("v_mov_b32 v5, 0")
    for batch in range(2):
        for kk in range(20):
            ks = batch * 20 + kk
            for j in range(8):
                k.vm(f"L{ks}", f"buffer_load_ushort v{R0 + kk*8 + j}, v2, s[16:19], s15 offen")
                k.e("s_add_u32 s15, s15, s14")
            k.e("s_lshl_b32 s24, s14, 3")
            k.e("s_add_u32 s15, s15, s24")
        for kk in range(20):
            ks = batch * 20 + kk
            k.wait(vm=f"L{ks}")
            for r in range(4):
                a = R0 + kk * 8 + 2 * r
                k.e(f"v_lshlrev_b32 v6, 16, v{a}")
                k.e(f"v_lshlrev_b32 v7, 16, v{a+1}")
                k.e("v_add_f32 v5, v5, v6")
                k.e("v_add_f32 v5, v5, v7")
                k.e(f"v_lshl_or_b32 v{8+r}, v{a+1}, 16, v{a}")
            k.vm(f"S{ks}", "buffer_store_dwordx4 v[8:11], v4, s[20:23], 0 offen")
            k.e("v_add_u32 v4, 1024, v4")
    k.e("s_cmp_eq_u32 s11, -1")
    k.e(f"s_cbranch_scc1 {end}")
    k.e("v_mov_b32 v6, v5")
    k.n(2)
    k.e("v_permlane32_swap_b32 v5, v6")
    k.e("v_add_f32 v5, v5, v6")
    k.e("s_lshl_b32 s24, s9, 7")
    k.e("s_add_u32 s24, s24, s11")
    k.e("s_add_u32 s28, s4, s24")
    k.e("s_addc_u32 s29, s5, 0")
    k.e("s_mov_b32 s30, 128")
    k.e("s_mov_b32 s31, 0x00020000")
    k.e("v_and_b32 v4, 63, v0")
    k.e("v_lshlrev_b32 v4, 2, v4")
    k.e("buffer_store_dword v5, v4, s[28:31], 0 offen")
    k.label(end)
    k.e("s_endpgm")
    return k


XPITCH = 1296
XPANEL = 64 * XPITCH
GEMM_LDS = XPANEL + 4 * 512


def gen_gemm(name, kind, xsrc, resid=None, dst=None):
    NTW = 2 if kind == "B1" else 1
    nblk = {"A1": 6, "B1": 8, "OUT": 5}[kind]
    ntiles = {"A1": 22, "B1": 60, "OUT": 20}[kind]
    LN = kind != "OUT"
    k = Kern(name)
    k.label(name)
    end = f"L_{name}_end"
    k.e(f"s_cmp_ge_u32 s2, {32*nblk}")
    k.e(f"s_cbranch_scc1 {end}")
    k.e(f"s_load_dwordx2 s[4:5], s[0:1], {KA_WS}")
    if xsrc[0] == "in":
        k.e(f"s_load_dwordx2 s[6:7], s[0:1], {xsrc[1]}")
    if resid is not None and resid[0] == "in":
        k.e(f"s_load_dwordx2 s[36:37], s[0:1], {resid[1]}")
    if dst is not None and dst[0] == "out":
        k.e(f"s_load_dwordx2 s[38:39], s[0:1], {KA_OUT}")
    k.e("s_and_b32 s32, s2, 31")
    k.e("s_lshr_b32 s33, s2, 5")
    k.e("v_lshrrev_b32 v1, 6, v0")
    k.n(1)
    k.e("v_readfirstlane_b32 s34, v1")
    k.wait_lg0()
    if xsrc[0] == "in":
        srd(k, 8, 6, 0, XBYTES)
    else:
        srd(k, 8, 4, xsrc[1], XBYTES)
    wbase = {"A1": WA_F, "B1": WQKV_F}.get(kind)
    if kind == "OUT":
        wbase = resid[2]
    srd(k, 12, 4, wbase, ntiles * TILEB)
    k.e("s_mul_i32 s35, s32, 81920")
    ST = 64
    for i in range(20):
        k.e(f"v_add_u32 v2, {256*i}, v0")
        k.e("v_lshlrev_b32 v3, 4, v2")
        k.vm(f"P{i}", f"buffer_load_dwordx4 v[{ST+4*i}:{ST+4*i+3}], v3, s[8:11], s35 offen")
    for i in range(20):
        k.e(f"v_add_u32 v2, {256*i}, v0")
        k.e("v_mul_u32_u24 v3, 52429, v2")
        k.e("v_lshrrev_b32 v3, 22, v3")
        k.e("v_add_u32 v3, v3, v2")
        k.e("v_lshlrev_b32 v3, 4, v3")
        k.wait(vm=f"P{i}")
        k.lg(f"W{i}", f"ds_write_b128 v3, v[{ST+4*i}:{ST+4*i+3}]")
    k.wait_lg0()
    k.e("s_barrier")
    k.e(f"s_mul_i32 s40, s33, {4*NTW}")
    k.e(f"s_mul_i32 s41, s34, {NTW}")
    k.e("s_add_u32 s40, s40, s41")
    k.e(f"s_cmp_ge_u32 s40, {ntiles}")
    k.e(f"s_cbranch_scc1 {end}")
    ACC = 64
    WB = 128
    XB = 160
    SUM = 176
    PF = 4
    for i in range(NTW):
        k.e(f"s_add_u32 s41, s40, {i}")
        k.e(f"s_mul_i32 s{42+i}, s41, {TILEB}")
    k.e("v_and_b32 v2, 63, v0")
    k.e("v_lshlrev_b32 v4, 4, v2")
    k.e("v_and_b32 v3, 31, v0")
    k.e(f"v_mul_u32_u24 v5, {XPITCH}, v3")
    k.e("v_bfe_u32 v6, v0, 5, 1")
    k.e("v_lshlrev_b32 v6, 4, v6")
    k.e("v_add_u32 v5, v5, v6")
    k.e(f"v_add_u32 v7, {32*XPITCH}, v5")
    for i in range(4 * NTW * 2):
        k.e(f"v_mov_b32 v{ACC+ i*4 + 0}, 0")
        k.e(f"v_mov_b32 v{ACC+ i*4 + 1}, 0")
        k.e(f"v_mov_b32 v{ACC+ i*4 + 2}, 0")
        k.e(f"v_mov_b32 v{ACC+ i*4 + 3}, 0")
    if LN:
        for i in range(4):
            k.e(f"v_mov_b32 v{SUM+i}, 0")
        k.e("v_mov_b32 v180, 0x3f803f80")

    def acc(i, tt):
        return ACC + (i * 2 + tt) * 16

    def mainloop(vtype):
        def wload(ks):
            for i in range(NTW):
                k.vm(f"Wk{ks}", f"buffer_load_dwordx4 v[{WB+((ks%PF)*NTW+i)*4}:{WB+((ks%PF)*NTW+i)*4+3}], v4, s[12:15], s{42+i} offen")
            for i in range(NTW):
                k.e(f"s_add_u32 s{42+i}, s{42+i}, 1024")

        def xload(ks):
            k.lg(f"Xk{ks}", f"ds_read_b128 v[{XB+(ks%2)*8}:{XB+(ks%2)*8+3}], v5 offset:{ks*32}")
            k.lg(f"Xk{ks}", f"ds_read_b128 v[{XB+(ks%2)*8+4}:{XB+(ks%2)*8+7}], v7 offset:{ks*32}")
        for ks in range(PF):
            wload(ks)
        xload(0)
        for ks in range(40):
            if ks + PF < 40:
                pass
            if ks + 1 < 40:
                xload(ks + 1)
            k.wait(vm=f"Wk{ks}", lg=f"Xk{ks}")
            for i in range(NTW):
                for tt in range(2):
                    w = WB + ((ks % PF) * NTW + i) * 4
                    x = XB + (ks % 2) * 8 + tt * 4
                    a = acc(i, tt)
                    if vtype:
                        k.e(f"v_mfma_f32_32x32x16_bf16 v[{a}:{a+15}], v[{x}:{x+3}], v[{w}:{w+3}], v[{a}:{a+15}]")
                    else:
                        k.e(f"v_mfma_f32_32x32x16_bf16 v[{a}:{a+15}], v[{w}:{w+3}], v[{x}:{x+3}], v[{a}:{a+15}]")
            if LN:
                for tt in range(2):
                    for r in range(4):
                        x = XB + (ks % 2) * 8 + tt * 4 + r
                        k.e(f"v_dot2c_f32_bf16 v{SUM+tt}, v{x}, v180")
                        k.e(f"v_dot2c_f32_bf16 v{SUM+2+tt}, v{x}, v{x}")
            if ks + PF < 40:
                wload(ks + PF)
        k.n(12)

    def stats():
        for j in range(4):
            k.e(f"v_mov_b32 v186, v{SUM+j}")
            k.n(2)
            k.e(f"v_permlane32_swap_b32 v{SUM+j}, v186")
            k.e(f"v_add_f32 v{SUM+j}, v{SUM+j}, v186")
        k.e("s_mov_b32 s44, 0x%08x" % f32bits(1.0 / 640))
        k.e("s_mov_b32 s45, 0x%08x" % f32bits(1e-5))
        for tt in range(2):
            k.e(f"v_mul_f32 v186, s44, v{SUM+tt}")
            k.e(f"v_mul_f32 v187, s44, v{SUM+2+tt}")
            k.e("v_fma_f32 v187, -v186, v186, v187")
            k.e("v_add_f32 v187, s45, v187")
            k.e(f"v_rsq_f32 v{181+tt}, v187")
            k.n(1)
            k.e(f"v_mul_f32 v{183+tt}, v{181+tt}, v186")

    def epi_qk(i, Tsreg, img, scale, limit):
        k.e("v_bfe_u32 v8, v0, 5, 1")
        k.e("v_lshlrev_b32 v8, 2, v8")
        k.e("v_and_b32 v9, 31, v0")
        k.e(f"s_lshl_b32 s46, s{Tsreg}, 5")
        k.e("v_add_u32 v8, s46, v8")
        k.e("s_mov_b32 s47, 0x%08x" % f32bits(scale))
        for g in range(4):
            k.e(f"v_add_u32 v10, {8*g}, v8")
            k.e("v_lshlrev_b32 v11, 2, v10")
            k.vm(f"CS{g}", f"buffer_load_dwordx4 v[{12+4*g}:{15+4*g}], v11, s[16:19], 0 offen")
        for tt in range(2):
            k.e(f"v_mul_f32 v28, s47, v{181+tt}")
            k.e(f"v_mul_f32 v29, s47, v{183+tt}")
            a = acc(i, tt)
            k.e("s_lshl_b32 s48, s32, 1")
            k.e(f"s_add_u32 s48, s48, {tt}")
            k.e("s_lshl_b32 s48, s48, 11")
            for g in range(4):
                k.wait(vm=f"CS{g}")
                k.e(f"v_add_u32 v10, {8*g}, v8")
                k.e("v_mul_u32_u24 v11, 3277, v10")
                k.e("v_lshrrev_b32 v11, 16, v11")
                k.e("v_mul_u32_u24 v30, 20, v11")
                k.e("v_sub_u32 v30, v10, v30")
                k.e("v_lshrrev_b32 v30, 2, v30")
                k.e("v_lshlrev_b32 v11, 17, v11")
                k.e("v_lshlrev_b32 v31, 4, v9")
                k.e("v_add3_u32 v11, v11, v31, s48")
                k.e("v_lshrrev_b32 v31, 2, v30")
                k.e("v_lshl_add_u32 v11, v31, 10, v11")
                k.e("v_bfe_u32 v31, v30, 1, 1")
                k.e("v_lshl_add_u32 v11, v31, 9, v11")
                k.e("v_and_b32 v31, 1, v30")
                k.e("v_lshl_add_u32 v11, v31, 3, v11")
                for r in range(4):
                    k.e(f"v_mul_f32 v{32+r}, v29, v{12+4*g+r}")
                    k.e(f"v_fma_f32 v{32+r}, v28, v{a+4*g+r}, -v{32+r}")
                k.e("v_cvt_pk_bf16_f32 v36, v32, v33")
                k.e("v_cvt_pk_bf16_f32 v37, v34, v35")
                if limit is not None:
                    k.e(f"v_cmp_gt_u32 vcc, {limit}, v10")
                    k.e("s_and_saveexec_b64 s[50:51], vcc")
                k.vm("ST", f"buffer_store_dwordx2 v[36:37], v11, s[{img}:{img+3}], 0 offen")
                if limit is not None:
                    k.e("s_mov_b64 exec, s[50:51]")

    def epi_v(i, Tsreg, limit):
        k.e("s_lshl_b32 s46, s34, 9")
        k.e(f"s_add_u32 s46, s46, {XPANEL}")
        k.e("v_and_b32 v9, 31, v0")
        k.e("v_lshlrev_b32 v10, 2, v9")
        k.e("v_add_u32 v10, s46, v10")
        for tt in range(2):
            k.lg("SW", f"ds_write_b32 v10, v{181+tt} offset:{tt*256}")
            k.lg("SW", f"ds_write_b32 v10, v{183+tt} offset:{tt*256+128}")
        k.e(f"s_lshl_b32 s47, s{Tsreg}, 5")
        k.e("v_add_u32 v10, s47, v9")
        k.e("v_lshlrev_b32 v11, 2, v10")
        k.vm("CSV", "buffer_load_dword v12, v11, s[16:19], 0 offen")
        k.e("v_mul_u32_u24 v11, 3277, v10")
        k.e("v_lshrrev_b32 v11, 16, v11")
        k.e("v_mul_u32_u24 v13, 20, v11")
        k.e("v_sub_u32 v13, v10, v13")
        k.e("v_lshlrev_b32 v11, 17, v11")
        k.e("v_lshl_add_u32 v11, v13, 4, v11")
        k.e("v_bfe_u32 v13, v0, 5, 1")
        k.e("v_lshl_add_u32 v11, v13, 9, v11")
        k.e("v_lshlrev_b32 v13, 4, v13")
        k.e("v_add_u32 v13, s46, v13")
        k.wait(lg="SW")
        for tt in range(2):
            for g in range(4):
                k.lg(f"SR{tt}{g}", f"ds_read_b128 v[{16+8*g}:{19+8*g}], v13 offset:{tt*256+32*g}")
                k.lg(f"SR{tt}{g}", f"ds_read_b128 v[{20+8*g}:{23+8*g}], v13 offset:{tt*256+128+32*g}")
            a = acc(i, tt)
            k.e("s_lshl_b32 s48, s32, 1")
            k.e(f"s_add_u32 s48, s48, {tt}")
            k.e("s_lshl_b32 s48, s48, 11")
            k.wait(vm="CSV")
            for g in range(4):
                k.wait(lg=f"SR{tt}{g}")
                for r in range(4):
                    k.e(f"v_mul_f32 v48, v{20+8*g+r}, v12")
                    k.e(f"v_fma_f32 v{a+4*g+r}, v{16+8*g+r}, v{a+4*g+r}, -v48")
            for r in range(8):
                k.e(f"v_cvt_pk_bf16_f32 v{50+r}, v{a+2*r}, v{a+2*r+1}")
            if limit is not None:
                k.e("v_and_b32 v9, 31, v0")
                k.e(f"v_cmp_gt_u32 vcc, {limit}, v9")
                k.e("s_and_saveexec_b64 s[50:51], vcc")
            k.vm("ST", "buffer_store_dwordx4 v[50:53], v11, s[28:31], s48 offen")
            k.vm("ST", "buffer_store_dwordx4 v[54:57], v11, s[28:31], s48 offen offset:1024")
            if limit is not None:
                k.e("s_mov_b64 exec, s[50:51]")

    def epi_out(i):
        k.e("v_bfe_u32 v8, v0, 5, 1")
        k.e("v_lshlrev_b32 v8, 3, v8")
        k.e("v_and_b32 v9, 31, v0")
        k.e(f"v_mul_u32_u24 v9, {ROWB}, v9")
        k.e("v_add_u32 v8, v8, v9")
        k.e("s_lshl_b32 s46, s40, 6")
        k.e("s_add_u32 s46, s46, s35")
        k.e(f"v_add_u32 v9, {32*ROWB}, v8")
        for tt in range(2):
            for g in range(4):
                k.vm(f"R{tt}{g}", f"buffer_load_dwordx2 v[{12+2*(tt*4+g)}:{13+2*(tt*4+g)}], v{8+tt}, s[20:23], s46 offen offset:{16*g}")
        for tt in range(2):
            a = acc(i, tt)
            for g in range(4):
                k.wait(vm=f"R{tt}{g}")
                rr = 12 + 2 * (tt * 4 + g)
                k.e(f"v_lshlrev_b32 v32, 16, v{rr}")
                k.e(f"v_and_b32 v33, 0xffff0000, v{rr}")
                k.e(f"v_lshlrev_b32 v34, 16, v{rr+1}")
                k.e(f"v_and_b32 v35, 0xffff0000, v{rr+1}")
                for r in range(4):
                    k.e(f"v_add_f32 v{32+r}, v{32+r}, v{a+4*g+r}")
                k.e("v_cvt_pk_bf16_f32 v36, v32, v33")
                k.e("v_cvt_pk_bf16_f32 v37, v34, v35")
                k.vm("ST", f"buffer_store_dwordx2 v[36:37], v{8+tt}, s[24:27], s46 offen offset:{16*g}")

    if kind == "OUT":
        if resid[0] == "in":
            srd(k, 20, 36, 0, XBYTES)
        else:
            srd(k, 20, 4, resid[1], XBYTES)
        if dst[0] == "out":
            srd(k, 24, 38, 0, XBYTES)
        else:
            srd(k, 24, 4, dst[1], XBYTES)
        mainloop(False)
        epi_out(0)
    else:
        cs = CS_A if kind == "A1" else CS_B
        srd(k, 16, 4, cs, (704 if kind == "A1" else 1920) * 4)
        srd(k, 20, 4, QIMG, IMGB)
        srd(k, 24, 4, KIMG, IMGB)
        srd(k, 28, 4, VIMG, IMGB)
        vstart = 21 if kind == "A1" else 40
        kstart = 20
        lv = f"L_{name}_vtype"
        k.e(f"s_cmp_ge_u32 s40, {vstart}")
        k.e(f"s_cbranch_scc1 {lv}")
        mainloop(False)
        stats()
        lk = f"L_{name}_ktype"
        k.e(f"s_cmp_ge_u32 s40, {kstart}")
        k.e(f"s_cbranch_scc1 {lk}")
        for i in range(NTW):
            k.e(f"s_add_u32 s49, s40, {i}")
            epi_qk(i, 49, 20, QSCALE, None)
        k.e(f"s_branch {end}")
        k.label(lk)
        for i in range(NTW):
            if kind == "A1":
                k.e("s_mov_b32 s49, 20")
                epi_qk_a1k(k, acc(i, 0), acc(i, 1))
            else:
                k.e(f"s_add_u32 s49, s40, {i - kstart}")
                epi_qk_b1k(k, i, acc)
        k.e(f"s_branch {end}")
        k.label(lv)
        mainloop(True)
        stats()
        for i in range(NTW):
            if kind == "A1":
                epi_v_generic(k, acc(i, 0), acc(i, 1), csoff=672, nbase=0, limit=20)
            else:
                k.e(f"s_add_u32 s49, s40, {i - vstart}")
                epi_v_generic(k, acc(i, 0), acc(i, 1), csoff=None, nbase=None, limit=None)
    k.label(end)
    k.e("s_endpgm")
    return k


def _qk_store(k, a_list, n_sec_reg, cs_base_elems, img, scale, limit):
    k.e("v_bfe_u32 v8, v0, 5, 1")
    k.e("v_lshlrev_b32 v8, 2, v8")
    k.e("v_and_b32 v9, 31, v0")
    k.e(f"v_add_u32 v8, s{n_sec_reg}, v8")
    k.e("s_mov_b32 s47, 0x%08x" % f32bits(scale))
    for g in range(4):
        k.e(f"v_add_u32 v10, {8*g+cs_base_elems}, v8")
        k.e("v_lshlrev_b32 v11, 2, v10")
        k.vm(f"CS{g}", f"buffer_load_dwordx4 v[{12+4*g}:{15+4*g}], v11, s[16:19], 0 offen")
    for tt in range(2):
        k.e(f"v_mul_f32 v28, s47, v{181+tt}")
        k.e(f"v_mul_f32 v29, s47, v{183+tt}")
        a = a_list[tt]
        k.e("s_lshl_b32 s48, s32, 1")
        k.e(f"s_add_u32 s48, s48, {tt}")
        k.e("s_lshl_b32 s48, s48, 11")
        for g in range(4):
            k.wait(vm=f"CS{g}")
            k.e(f"v_add_u32 v10, {8*g}, v8")
            k.e("v_mul_u32_u24 v11, 3277, v10")
            k.e("v_lshrrev_b32 v11, 16, v11")
            k.e("v_mul_u32_u24 v30, 20, v11")
            k.e("v_sub_u32 v30, v10, v30")
            k.e("v_lshrrev_b32 v30, 2, v30")
            k.e("v_lshlrev_b32 v11, 17, v11")
            k.e("v_lshlrev_b32 v31, 4, v9")
            k.e("v_add3_u32 v11, v11, v31, s48")
            k.e("v_lshrrev_b32 v31, 2, v30")
            k.e("v_lshl_add_u32 v11, v31, 10, v11")
            k.e("v_bfe_u32 v31, v30, 1, 1")
            k.e("v_lshl_add_u32 v11, v31, 9, v11")
            k.e("v_and_b32 v31, 1, v30")
            k.e("v_lshl_add_u32 v11, v31, 3, v11")
            for r in range(4):
                k.e(f"v_mul_f32 v{32+r}, v29, v{12+4*g+r}")
                k.e(f"v_fma_f32 v{32+r}, v28, v{a+4*g+r}, -v{32+r}")
            k.e("v_cvt_pk_bf16_f32 v36, v32, v33")
            k.e("v_cvt_pk_bf16_f32 v37, v34, v35")
            if limit is not None:
                k.e(f"v_cmp_gt_u32 vcc, {limit}, v10")
                k.e("s_and_saveexec_b64 s[50:51], vcc")
            k.vm("ST", f"buffer_store_dwordx2 v[36:37], v11, s[{img}:{img+3}], 0 offen")
            if limit is not None:
                k.e("s_mov_b64 exec, s[50:51]")


def epi_qk_a1k(k, a0, a1):
    k.e("s_mov_b32 s52, 0")
    _qk_store(k, [a0, a1], 52, 640, 24, 1.0, 20)


def epi_qk_b1k(k, i, acc):
    k.e("s_lshl_b32 s52, s49, 5")
    _qk_store(k, [acc(i, 0), acc(i, 1)], 52, 640, 24, 1.0, None)


def epi_v_generic(k, a0, a1, csoff, nbase, limit):
    k.e("s_lshl_b32 s46, s34, 9")
    k.e(f"s_add_u32 s46, s46, {XPANEL}")
    k.e("v_and_b32 v9, 31, v0")
    k.e("v_lshlrev_b32 v10, 2, v9")
    k.e("v_add_u32 v10, s46, v10")
    for tt in range(2):
        k.lg("SW", f"ds_write_b32 v10, v{181+tt} offset:{tt*256}")
        k.lg("SW", f"ds_write_b32 v10, v{183+tt} offset:{tt*256+128}")
    if nbase is None:
        k.e("s_lshl_b32 s47, s49, 5")
        k.e("v_add_u32 v10, s47, v9")
        csb = 1280
    else:
        k.e("v_mov_b32 v10, v9")
        csb = csoff
    k.e(f"v_add_u32 v11, {csb}, v10")
    k.e("v_lshlrev_b32 v11, 2, v11")
    k.vm("CSV", "buffer_load_dword v12, v11, s[16:19], 0 offen")
    k.e("v_mul_u32_u24 v11, 3277, v10")
    k.e("v_lshrrev_b32 v11, 16, v11")
    k.e("v_mul_u32_u24 v13, 20, v11")
    k.e("v_sub_u32 v13, v10, v13")
    k.e("v_lshlrev_b32 v11, 17, v11")
    k.e("v_lshl_add_u32 v11, v13, 4, v11")
    k.e("v_bfe_u32 v13, v0, 5, 1")
    k.e("v_lshl_add_u32 v11, v13, 9, v11")
    k.e("v_lshlrev_b32 v13, 4, v13")
    k.e("v_add_u32 v13, s46, v13")
    k.wait(lg="SW")
    for tt in range(2):
        for g in range(4):
            k.lg(f"SR{tt}{g}", f"ds_read_b128 v[{16+8*g}:{19+8*g}], v13 offset:{tt*256+32*g}")
            k.lg(f"SR{tt}{g}", f"ds_read_b128 v[{20+8*g}:{23+8*g}], v13 offset:{tt*256+128+32*g}")
        a = [a0, a1][tt]
        k.e("s_lshl_b32 s48, s32, 1")
        k.e(f"s_add_u32 s48, s48, {tt}")
        k.e("s_lshl_b32 s48, s48, 11")
        k.wait(vm="CSV")
        for g in range(4):
            k.wait(lg=f"SR{tt}{g}")
            for r in range(4):
                k.e(f"v_mul_f32 v48, v{20+8*g+r}, v12")
                k.e(f"v_fma_f32 v{a+4*g+r}, v{16+8*g+r}, v{a+4*g+r}, -v48")
        for r in range(8):
            k.e(f"v_cvt_pk_bf16_f32 v{50+r}, v{a+2*r}, v{a+2*r+1}")
        if limit is not None:
            k.e(f"v_cmp_gt_u32 vcc, {limit}, v9")
            k.e("s_and_saveexec_b64 s[50:51], vcc")
        k.vm("ST", "buffer_store_dwordx4 v[50:53], v11, s[28:31], s48 offen")
        k.vm("ST", "buffer_store_dwordx4 v[54:57], v11, s[28:31], s48 offen offset:1024")
        if limit is not None:
            k.e("s_mov_b64 exec, s[50:51]")


ATT_A_LDS = 2 * 32768
ATT_B_LDS = 16 * 4096


def attn_common_regs():
    return dict(Q=8, S0=16, S1=32, O=48, KF=64, VF=80, P=96, M=104, T=106, STG=112)


def emit_q_load(k, R):
    Q = R["Q"]
    k.e("s_lshl_b32 s22, s20, 6")
    k.e("s_add_u32 s22, s22, s21")
    k.e("s_lshl_b32 s22, s22, 11")
    k.e("v_and_b32 v1, 63, v0")
    k.e("v_lshlrev_b32 v2, 4, v1")
    k.vm("Q", f"buffer_load_dwordx4 v[{Q}:{Q+3}], v2, s[8:11], s22 offen")
    k.vm("Q", f"buffer_load_dwordx2 v[{Q+4}:{Q+5}], v2, s[8:11], s22 offen offset:1024")
    k.e(f"v_mov_b32 v{Q+6}, 0")
    k.e(f"v_mov_b32 v{Q+7}, 0")


def emit_q_fix(k, R):
    Q = R["Q"]
    k.wait(vm="Q")
    k.e("v_cmp_gt_u32 vcc, 32, v1")
    k.n(2)
    k.e(f"v_cndmask_b32 v{Q+4}, 0, v{Q+4}, vcc")
    k.e(f"v_cndmask_b32 v{Q+5}, 0, v{Q+5}, vcc")


def emit_tile_reads(k, R, buf, tag, kaddr, k1addr, vaddr, off):
    KF, VF = R["KF"] + buf * 8, R["VF"] + buf * 8
    k.lg(tag, f"ds_read_b128 v[{KF}:{KF+3}], v{kaddr} offset:{off}")
    k.lg(tag, f"ds_read_b64 v[{KF+4}:{KF+5}], v{k1addr} offset:{off+1024}")
    k.lg(tag + "v", f"ds_read_b128 v[{VF}:{VF+3}], v{vaddr} offset:{off}")
    k.lg(tag + "v", f"ds_read_b128 v[{VF+4}:{VF+7}], v{vaddr} offset:{off+1024}")


def emit_qk(k, R, buf, Sreg):
    KF, Q = R["KF"] + buf * 8, R["Q"]
    k.e(f"v_mfma_f32_32x32x16_bf16 v[{Sreg}:{Sreg+15}], v[{KF}:{KF+3}], v[{Q}:{Q+3}], 0")
    k.e(f"v_mfma_f32_32x32x16_bf16 v[{Sreg}:{Sreg+15}], v[{KF+4}:{KF+7}], v[{Q+4}:{Q+7}], v[{Sreg}:{Sreg+15}]")


def emit_softmax_pv(k, R, buf, Sreg, tagv):
    O, P, M, T = R["O"], R["P"], R["M"], R["T"]
    VF = R["VF"] + buf * 8
    k.e(f"v_max3_f32 v{T}, v{Sreg}, v{Sreg+1}, v{Sreg+2}")
    for r in range(3, 15, 2):
        k.e(f"v_max3_f32 v{T}, v{T}, v{Sreg+r}, v{Sreg+r+1}")
    k.e(f"v_max_f32 v{T}, v{T}, v{Sreg+15}")
    k.e(f"v_mov_b32 v{T+1}, v{T}")
    k.n(2)
    k.e(f"v_permlane32_swap_b32 v{T}, v{T+1}")
    k.e(f"v_max3_f32 v{T}, v{T}, v{T+1}, v{M}")
    k.e(f"v_sub_f32 v{T+1}, v{M}, v{T}")
    k.e(f"v_exp_f32 v{T+1}, v{T+1}")
    k.e(f"v_mov_b32 v{M}, v{T}")
    for r in range(16):
        k.e(f"v_sub_f32 v{Sreg+r}, v{Sreg+r}, v{T}")
    for r in range(12):
        k.e(f"v_mul_f32 v{O+r}, v{O+r}, v{T+1}")
    for r in range(16):
        k.e(f"v_exp_f32 v{Sreg+r}, v{Sreg+r}")
    k.n(1)
    for r in range(8):
        k.e(f"v_cvt_pk_bf16_f32 v{P+r}, v{Sreg+2*r}, v{Sreg+2*r+1}")
    k.wait(lg=tagv)
    k.n(1)
    k.e(f"v_mfma_f32_32x32x16_bf16 v[{O}:{O+15}], v[{VF}:{VF+3}], v[{P}:{P+3}], v[{O}:{O+15}]")
    k.e(f"v_mfma_f32_32x32x16_bf16 v[{O}:{O+15}], v[{VF+4}:{VF+7}], v[{P+4}:{P+7}], v[{O}:{O+15}]")


def emit_attn_epilogue(k, R):
    O, T = R["O"], R["T"]
    k.n(12)
    k.e(f"v_mov_b32 v{T}, v{O+8}")
    k.e(f"v_mov_b32 v{T+1}, v{O+8}")
    k.n(2)
    k.e(f"v_permlane32_swap_b32 v{T}, v{T+1}")
    k.e(f"v_rcp_f32 v{T+1}, v{T+1}")
    k.n(1)
    for r in range(12):
        k.e(f"v_mul_f32 v{O+r}, v{O+r}, v{T+1}")
    k.e("v_and_b32 v2, 31, v0")
    k.e("s_lshl_b32 s22, s21, 5")
    k.e("v_add_u32 v2, s22, v2")
    k.e(f"v_mul_u32_u24 v2, {ROWB}, v2")
    k.e("v_bfe_u32 v3, v0, 5, 1")
    k.e("v_lshl_add_u32 v2, v3, 3, v2")
    k.e("s_mul_i32 s22, s20, 40")
    for g in range(3):
        k.e(f"v_cvt_pk_bf16_f32 v{T}, v{O+4*g}, v{O+4*g+1}")
        k.e(f"v_cvt_pk_bf16_f32 v{T+1}, v{O+4*g+2}, v{O+4*g+3}")
        if g == 2:
            k.e("v_cmp_gt_u32 vcc, 32, v1")
            k.e("s_and_saveexec_b64 s[24:25], vcc")
        k.vm("ST", f"buffer_store_dwordx2 v[{T}:{T+1}], v2, s[16:19], s22 offen offset:{16*g}")
    k.e("s_mov_b64 exec, s[24:25]")


def emit_stage_issue(k, R, ksrd_off_sreg, n_per_mat):
    pass


def gen_attnA(name):
    R = attn_common_regs()
    k = Kern(name)
    k.label(name)
    end = f"L_{name}_end"
    k.e("s_cmp_ge_u32 s2, 256")
    k.e(f"s_cbranch_scc1 {end}")
    k.e(f"s_load_dwordx2 s[4:5], s[0:1], {KA_WS}")
    k.e("v_lshrrev_b32 v1, 6, v0")
    k.n(1)
    k.e("v_readfirstlane_b32 s23, v1")
    k.e("s_lshr_b32 s20, s2, 3")
    k.e("s_and_b32 s21, s2, 7")
    k.e("s_lshl_b32 s21, s21, 3")
    k.e("s_add_u32 s21, s21, s23")
    k.wait_lg0()
    srd(k, 8, 4, QIMG, IMGB)
    srd(k, 12, 4, KIMG, 2 * IMGB)
    srd(k, 16, 4, OBUF, XBYTES)
    emit_q_load(k, R)
    STG = R["STG"]
    k.e("v_lshlrev_b32 v4, 4, v0")
    k.e("v_and_b32 v5, 31, v0")
    k.e("v_cmp_eq_u32 s[26:27], 20, v5")
    k.e("v_mov_b32 v5, 0x3f803f80")

    def stage_load(c):
        k.e(f"s_mov_b32 s28, {c*16384}")
        k.e(f"s_mov_b32 s29, {VIMG-KIMG + c*16384}")
        for i in range(2):
            k.vm(f"G{c}", f"buffer_load_dwordx4 v[{STG+4*i}:{STG+4*i+3}], v4, s[12:15], s28 offen offset:0" if i == 0 else
                 f"buffer_load_dwordx4 v[{STG+4*i}:{STG+4*i+3}], v6, s[12:15], s28 offen")
        for i in range(2):
            k.vm(f"G{c}", f"buffer_load_dwordx4 v[{STG+8+4*i}:{STG+8+4*i+3}], {'v4' if i==0 else 'v6'}, s[12:15], s29 offen")

    def stage_write(c):
        base = (c % 2) * 32768
        k.wait(vm=f"G{c}")
        for r in range(8):
            k.e(f"v_cndmask_b32 v{STG+8+r}, v{STG+8+r}, v5, s[26:27]")
        k.lg("SW", f"ds_write_b128 v4, v[{STG}:{STG+3}] offset:{base}")
        k.lg("SW", f"ds_write_b128 v4, v[{STG+4}:{STG+7}] offset:{base+8192}")
        k.lg("SW", f"ds_write_b128 v4, v[{STG+8}:{STG+11}] offset:{base+16384}")
        k.lg("SW", f"ds_write_b128 v4, v[{STG+12}:{STG+15}] offset:{base+16384+8192}")

    k.e("v_add_u32 v6, 8192, v4")
    stage_load(0)
    emit_q_fix(k, R)
    k.e("v_and_b32 v1, 63, v0")
    k.e("v_lshlrev_b32 v7, 4, v1")
    k.e("v_and_b32 v3, 31, v0")
    k.e("v_lshlrev_b32 v3, 4, v3")
    k.e("v_add_u32 v2, 16384, v7")
    KF = R["KF"]
    for b in range(2):
        k.e(f"v_mov_b32 v{KF+b*8+6}, 0")
        k.e(f"v_mov_b32 v{KF+b*8+7}, 0")
    for r in range(16):
        k.e(f"v_mov_b32 v{R['O']+r}, 0")
    k.e(f"v_mov_b32 v{R['M']}, 0xf149f2ca")
    stage_write(0)
    k.wait_lg0()
    k.e("s_barrier")
    NCH = 8
    for c in range(NCH):
        base = (c % 2) * 32768
        if c + 1 < NCH:
            stage_load(c + 1)
        emit_tile_reads(k, R, 0, "T0", 7, 3, 2, base)
        k.wait(lg="T0")
        emit_qk(k, R, 0, R["S0"])
        for t in range(8):
            Sc = R["S0"] if t % 2 == 0 else R["S1"]
            Sn = R["S1"] if t % 2 == 0 else R["S0"]
            if t < 7:
                emit_tile_reads(k, R, (t + 1) % 2, f"T{t+1}", 7, 3, 2, base + (t + 1) * 2048)
                k.wait(lg=f"T{t+1}")
                emit_qk(k, R, (t + 1) % 2, Sn)
            else:
                k.n(8)
            emit_softmax_pv(k, R, t % 2, Sc, f"T{t}v")
        if c + 1 < NCH:
            stage_write(c + 1)
            k.wait_lg0()
            k.e("s_barrier")
    emit_attn_epilogue(k, R)
    k.label(end)
    k.e("s_endpgm")
    return k


def gen_attnB(name):
    R = attn_common_regs()
    k = Kern(name)
    k.label(name)
    end = f"L_{name}_end"
    k.e("s_cmp_ge_u32 s2, 256")
    k.e(f"s_cbranch_scc1 {end}")
    k.e(f"s_load_dwordx2 s[4:5], s[0:1], {KA_WS}")
    k.e("v_lshrrev_b32 v1, 6, v0")
    k.n(1)
    k.e("v_readfirstlane_b32 s23, v1")
    k.e("s_lshr_b32 s20, s2, 3")
    k.e("s_and_b32 s30, s2, 7")
    k.e("s_lshl_b32 s21, s30, 3")
    k.e("s_add_u32 s21, s21, s23")
    k.wait_lg0()
    srd(k, 8, 4, QIMG, IMGB)
    srd(k, 12, 4, KIMG, 2 * IMGB)
    srd(k, 16, 4, OBUF, XBYTES)
    emit_q_load(k, R)
    STG = R["STG"]
    k.e("v_lshlrev_b32 v4, 4, v0")
    k.e("s_lshl_b32 s28, s20, 17")
    k.e("s_lshl_b32 s29, s30, 14")
    k.e("s_add_u32 s28, s28, s29")
    k.e("v_and_b32 v5, 31, v0")
    k.e("v_cmp_eq_u32 s[26:27], 20, v5")
    k.e("v_mov_b32 v5, 0x3f803f80")
    for half in range(2):
        skip = f"L_{name}_skip{half}"
        if half == 0:
            k.e("s_cmp_eq_u32 s30, 0")
            k.e(f"s_cbranch_scc1 {skip}")
            k.e("s_sub_u32 s29, s28, 16384")
        else:
            k.e("s_mov_b32 s29, s28")
        k.e(f"s_add_u32 s31, s29, {VIMG-KIMG}")
        k.vm("G", f"buffer_load_dwordx4 v[{STG}:{STG+3}], v4, s[12:15], s29 offen")
        k.vm("G", f"buffer_load_dwordx4 v[{STG+4}:{STG+7}], v4, s[12:15], s29 offen offset:0")
        k.lines.pop()
        k.vmq.pop()
        k.e("v_add_u32 v6, 8192, v4")
        k.vm("G", f"buffer_load_dwordx4 v[{STG+4}:{STG+7}], v6, s[12:15], s29 offen")
        k.vm("G", f"buffer_load_dwordx4 v[{STG+8}:{STG+11}], v4, s[12:15], s31 offen")
        k.vm("G", f"buffer_load_dwordx4 v[{STG+12}:{STG+15}], v6, s[12:15], s31 offen")
        k.wait(vm="G")
        for r in range(8):
            k.e(f"v_cndmask_b32 v{STG+8+r}, v{STG+8+r}, v5, s[26:27]")
        base = half * 16384
        k.lg("SW", f"ds_write_b128 v4, v[{STG}:{STG+3}] offset:{base}")
        k.lg("SW", f"ds_write_b128 v4, v[{STG+4}:{STG+7}] offset:{base+8192}")
        k.lg("SW", f"ds_write_b128 v4, v[{STG+8}:{STG+11}] offset:{32768+base}")
        k.lg("SW", f"ds_write_b128 v4, v[{STG+12}:{STG+15}] offset:{32768+base+8192}")
        k.wait_lg0()
        if half == 0:
            k.label(skip)
    emit_q_fix(k, R)
    k.e("v_and_b32 v1, 63, v0")
    k.e("v_lshlrev_b32 v7, 4, v1")
    k.e("s_lshl_b32 s28, s23, 11")
    k.e("v_add_u32 v7, s28, v7")
    k.e("v_and_b32 v3, 31, v0")
    k.e("v_lshlrev_b32 v3, 4, v3")
    k.e("v_add_u32 v3, s28, v3")
    k.e("v_add_u32 v2, 32768, v7")
    KF = R["KF"]
    for b in range(2):
        k.e(f"v_mov_b32 v{KF+b*8+6}, 0")
        k.e(f"v_mov_b32 v{KF+b*8+7}, 0")
    for r in range(16):
        k.e(f"v_mov_b32 v{R['O']+r}, 0")
    k.e(f"v_mov_b32 v{R['M']}, 0xf149f2ca")
    k.e("v_and_b32 v110, 31, v0")
    k.e("v_bfe_u32 v111, v0, 5, 1")
    k.e("v_lshlrev_b32 v111, 2, v111")
    k.e("v_sub_u32 v110, v110, v111")
    k.e("v_mov_b32 v111, 0xf149f2ca")
    k.e("s_barrier")
    for t in range(9):
        skip = f"L_{name}_t{t}"
        k.e(f"s_cmp_lt_u32 s21, {8-t}")
        k.e(f"s_cbranch_scc1 {skip}")
        emit_tile_reads(k, R, 0, "T", 7, 3, 2, t * 2048)
        k.wait(lg="T")
        emit_qk(k, R, 0, R["S0"])
        k.n(12)
        Sreg = R["S0"]
        if t == 0:
            for r in range(16):
                il = 8 * (r // 4) + r % 4
                k.e(f"v_cmp_gt_i32 vcc, {il}, v110")
                k.n(1)
                k.e(f"v_cndmask_b32 v{Sreg+r}, v111, v{Sreg+r}, vcc")
        if t == 8:
            for r in range(16):
                il = 8 * (r // 4) + r % 4
                k.e(f"v_cmp_le_i32 vcc, {il}, v110")
                k.n(1)
                k.e(f"v_cndmask_b32 v{Sreg+r}, v111, v{Sreg+r}, vcc")
        emit_softmax_pv(k, R, 0, Sreg, "Tv")
        k.label(skip)
    emit_attn_epilogue(k, R)
    k.label(end)
    k.e("s_endpgm")
    return k


def build():
    kernels = []
    launches = []

    def add(kern, grid, block, lds, vgpr=256):
        if kern.name not in [kk.name for kk, _ in kernels]:
            kernels.append((kern, vgpr))
        launches.append((kern.name, grid, block, lds))
    add(gen_prep(), 31, 256, 0)
    xin = ("in", KA_AX)
    xs = [xin, ("ws", X1), ("ws", X2), ("ws", X3)]
    dsts = [("ws", X1), ("ws", X2), ("ws", X3), ("out",)]
    for layer in range(4):
        x = xs[layer]
        if layer % 2 == 0:
            add(gen_gemm(f"a1_{layer}_kernel", "A1", x), 32 * 6, 256, GEMM_LDS)
            add(gen_attnA("attna_kernel"), 256, 512, ATT_A_LDS)
            add(gen_gemm(f"outa_{layer}_kernel", "OUT", ("ws", OBUF), resid=(x[0], x[1], WOA_F), dst=dsts[layer]), 32 * 5, 256, GEMM_LDS)
        else:
            add(gen_gemm(f"b1_{layer}_kernel", "B1", x), 32 * 8, 256, GEMM_LDS)
            add(gen_attnB("attnb_kernel"), 256, 512, ATT_B_LDS)
            add(gen_gemm(f"outb_{layer}_kernel", "OUT", ("ws", OBUF), resid=(x[0], x[1], WOB_F), dst=dsts[layer]), 32 * 5, 256, GEMM_LDS)
    return kernels, launches


HEADER = open("interleave_layers__grouped_kv_mqa__sliding_block__prompt.s.ref").read().split("\n")


def main():
    kernels, launches = build()
    out = []
    for line in HEADER:
        if line.startswith("; @launch") or not line.startswith(";"):
            break
        out.append(line)
    for name, grid, block, lds in launches:
        out.append(f"; @launch kernel={name} grid=({grid},1,1) block=({block},1,1) lds={lds}")
    out.append('.amdgcn_target "amdgcn-amd-amdhsa--gfx950"')
    out.append(".text")
    for kern, vg in kernels:
        out.append(f".globl {kern.name}")
        out.append(".p2align 8")
        out.append(f".type {kern.name},@function")
        out.append(kern.text())
    out.append('.section .rodata,"a"')
    for kern, vg in kernels:
        out.append(".p2align 6")
        out.append(f".amdhsa_kernel {kern.name}")
        out.append(f"  .amdhsa_next_free_vgpr {vg}")
        out.append("  .amdhsa_next_free_sgpr 102")
        out.append(f"  .amdhsa_accum_offset {vg}")
        out.append("  .amdhsa_group_segment_fixed_size 0")
        out.append("  .amdhsa_kernarg_size 88")
        out.append("  .amdhsa_user_sgpr_count 2")
        out.append("  .amdhsa_user_sgpr_kernarg_segment_ptr 1")
        out.append("  .amdhsa_system_sgpr_workgroup_id_x 1")
        out.append(".end_amdhsa_kernel")
    open("interleave_layers__grouped_kv_mqa__sliding_block__prompt.s", "w").write("\n".join(out) + "\n")


if __name__ == "__main__":
    main()
```

```python
import sys
sys.path.insert(0, "work")
from emit import Kern, v, s

S = 2048
D = 640
H = 32
DH = 20
ROWB = D * 2

KA_AX, KA_AWQ, KA_AWK, KA_AWV, KA_AWO, KA_BX, KA_BWQKV, KA_BWO, KA_OUT, KA_DBG, KA_WS = [8 * i for i in range(11)]

TILEB = 40 * 1024
WA_F = 0x000000
WOA_F = 0x100000
WQKV_F = 0x200000
WOB_F = 0x480000
CS_A = 0x580000
CS_B = 0x581000
X1 = 0x600000
X2 = 0x900000
X3 = 0xC00000
QIMG = 0x1000000
KIMG = 0x1400000
VIMG = 0x1800000
OBUF = 0x1C00000
XBYTES = S * ROWB
IMGB = 32 * 64 * 2048

LOG2E = 1.4426950408889634
QSCALE = LOG2E * (DH ** -0.5)

import struct


def f32bits(x):
    return struct.unpack("<I", struct.pack("<f", x))[0]


def srd(k, d, ptr, off, nbytes):
    k.e(f"s_add_u32 s{d}, s{ptr}, {off}")
    k.e(f"s_addc_u32 s{d+1}, s{ptr+1}, 0")
    k.e(f"s_mov_b32 s{d+2}, {nbytes}")
    k.e(f"s_mov_b32 s{d+3}, 0x00020000")


def gen_prep():
    k = Kern("prep_kernel")
    k.label("prep_kernel")
    k.e("v_lshrrev_b32 v1, 6, v0")
    k.n(1)
    k.e("v_readfirstlane_b32 s3, v1")
    k.e("s_lshl_b32 s4, s2, 2")
    k.e("s_add_u32 s3, s3, s4")
    k.e("s_cmp_ge_u32 s3, 122")
    end = "L_prep_end"
    k.e(f"s_cbranch_scc1 {end}")
    k.e(f"s_load_dwordx2 s[4:5], s[0:1], {KA_WS}")
    def sel(lbl_next, lim, ka, N, first, dst, cs):
        k.e(f"s_cmp_ge_u32 s3, {lim}")
        k.e(f"s_cbranch_scc1 {lbl_next}")
        k.e(f"s_load_dwordx2 s[6:7], s[0:1], {ka}")
        k.e(f"s_mov_b32 s8, {N}")
        k.e(f"s_sub_u32 s9, s3, {first}")
        k.e(f"s_mov_b32 s10, {dst}")
        k.e(f"s_mov_b32 s11, {cs}")
        k.e("s_branch L_prep_sel_done")
        k.label(lbl_next)
    sel("L_prep_s1", 20, KA_AWQ, 640, 0, WA_F, CS_A)
    sel("L_prep_s2", 21, KA_AWK, 20, 0, WA_F, CS_A)
    sel("L_prep_s3", 22, KA_AWV, 20, 0, WA_F, CS_A)
    sel("L_prep_s4", 42, KA_AWO, 640, 22, WOA_F, -1)
    sel("L_prep_s5", 102, KA_BWQKV, 1920, 42, WQKV_F, CS_B)
    sel("L_prep_s6", 122, KA_BWO, 640, 102, WOB_F, -1)
    k.label("L_prep_sel_done")
    k.wait_lg0()
    k.e("s_lshl_b32 s12, s9, 5")
    k.e("s_cmp_eq_u32 s8, 20")
    k.e("s_cselect_b32 s12, 0, s12")
    k.e("s_mov_b32 s16, s6")
    k.e("s_mov_b32 s17, s7")
    k.e("s_mul_i32 s18, s8, 1280")
    k.e("s_mov_b32 s19, 0x00020000")
    k.e(f"s_mul_i32 s13, s9, {TILEB}")
    k.e("s_add_u32 s13, s13, s10")
    k.e("s_add_u32 s20, s4, s13")
    k.e("s_addc_u32 s21, s5, 0")
    k.e(f"s_mov_b32 s22, {TILEB}")
    k.e("s_mov_b32 s23, 0x00020000")
    k.e("v_and_b32 v1, 31, v0")
    k.e("v_add_u32 v1, s12, v1")
    k.e("v_bfe_u32 v2, v0, 5, 1")
    k.e("v_lshlrev_b32 v2, 3, v2")
    k.e("v_mul_lo_u32 v2, v2, s8")
    k.e("v_add_u32 v2, v2, v1")
    k.e("v_lshlrev_b32 v2, 1, v2")
    k.e("v_cmp_gt_u32 vcc, s8, v1")
    k.e("v_mov_b32 v3, 0x7fffff00")
    k.n(1)
    k.e("v_cndmask_b32 v2, v3, v2, vcc")
    k.e("s_lshl_b32 s14, s8, 1")
    k.e("s_mov_b32 s15, 0")
    R0 = 32
    k.e("v_and_b32 v4, 63, v0")
    k.e("v_lshlrev_b32 v4, 4, v4")
    k.e("v_mov_b32 v5, 0")
    for batch in range(2):
        for kk in range(20):
            ks = batch * 20 + kk
            for j in range(8):
                k.vm(f"L{ks}", f"buffer_load_ushort v{R0 + kk*8 + j}, v2, s[16:19], s15 offen")
                k.e("s_add_u32 s15, s15, s14")
            k.e("s_lshl_b32 s24, s14, 3")
            k.e("s_add_u32 s15, s15, s24")
        for kk in range(20):
            ks = batch * 20 + kk
            k.wait(vm=f"L{ks}")
            for r in range(4):
                a = R0 + kk * 8 + 2 * r
                k.e(f"v_lshlrev_b32 v6, 16, v{a}")
                k.e(f"v_lshlrev_b32 v7, 16, v{a+1}")
                k.e("v_add_f32 v5, v5, v6")
                k.e("v_add_f32 v5, v5, v7")
                k.e(f"v_lshl_or_b32 v{8+r}, v{a+1}, 16, v{a}")
            k.vm(f"S{ks}", "buffer_store_dwordx4 v[8:11], v4, s[20:23], 0 offen")
            k.e("v_add_u32 v4, 1024, v4")
    k.e("s_cmp_eq_u32 s11, -1")
    k.e(f"s_cbranch_scc1 {end}")
    k.e("v_mov_b32 v6, v5")
    k.n(2)
    k.e("v_permlane32_swap_b32 v5, v6")
    k.e("v_add_f32 v5, v5, v6")
    k.e("s_lshl_b32 s24, s9, 7")
    k.e("s_add_u32 s24, s24, s11")
    k.e("s_add_u32 s28, s4, s24")
    k.e("s_addc_u32 s29, s5, 0")
    k.e("s_mov_b32 s30, 128")
    k.e("s_mov_b32 s31, 0x00020000")
    k.e("v_and_b32 v4, 63, v0")
    k.e("v_lshlrev_b32 v4, 2, v4")
    k.e("buffer_store_dword v5, v4, s[28:31], 0 offen")
    k.label(end)
    k.e("s_endpgm")
    return k


XPITCH = 1296
XPANEL = 64 * XPITCH
GEMM_LDS = XPANEL + 4 * 512


def gen_gemm(name, kind, xsrc, resid=None, dst=None):
    NTW = 2 if kind == "B1" else 1
    nblk = {"A1": 6, "B1": 8, "OUT": 5}[kind]
    ntiles = {"A1": 22, "B1": 60, "OUT": 20}[kind]
    LN = kind != "OUT"
    k = Kern(name)
    k.label(name)
    end = f"L_{name}_end"
    k.e(f"s_cmp_ge_u32 s2, {32*nblk}")
    k.e(f"s_cbranch_scc1 {end}")
    k.e(f"s_load_dwordx2 s[4:5], s[0:1], {KA_WS}")
    if xsrc[0] == "in":
        k.e(f"s_load_dwordx2 s[6:7], s[0:1], {xsrc[1]}")
    if resid is not None and resid[0] == "in":
        k.e(f"s_load_dwordx2 s[36:37], s[0:1], {resid[1]}")
    if dst is not None and dst[0] == "out":
        k.e(f"s_load_dwordx2 s[38:39], s[0:1], {KA_OUT}")
    k.e("s_and_b32 s32, s2, 31")
    k.e("s_lshr_b32 s33, s2, 5")
    k.e("v_lshrrev_b32 v1, 6, v0")
    k.n(1)
    k.e("v_readfirstlane_b32 s34, v1")
    k.wait_lg0()
    if xsrc[0] == "in":
        srd(k, 8, 6, 0, XBYTES)
    else:
        srd(k, 8, 4, xsrc[1], XBYTES)
    wbase = {"A1": WA_F, "B1": WQKV_F}.get(kind)
    if kind == "OUT":
        wbase = resid[2]
    srd(k, 12, 4, wbase, ntiles * TILEB)
    k.e("s_mul_i32 s35, s32, 81920")
    ST = 64
    for i in range(20):
        k.e(f"v_add_u32 v2, {256*i}, v0")
        k.e("v_lshlrev_b32 v3, 4, v2")
        k.vm(f"P{i}", f"buffer_load_dwordx4 v[{ST+4*i}:{ST+4*i+3}], v3, s[8:11], s35 offen")
    for i in range(20):
        k.e(f"v_add_u32 v2, {256*i}, v0")
        k.e("v_mul_u32_u24 v3, 52429, v2")
        k.e("v_lshrrev_b32 v3, 22, v3")
        k.e("v_add_u32 v3, v3, v2")
        k.e("v_lshlrev_b32 v3, 4, v3")
        k.wait(vm=f"P{i}")
        k.lg(f"W{i}", f"ds_write_b128 v3, v[{ST+4*i}:{ST+4*i+3}]")
    k.wait_lg0()
    k.e("s_barrier")
    k.e(f"s_mul_i32 s40, s33, {4*NTW}")
    k.e(f"s_mul_i32 s41, s34, {NTW}")
    k.e("s_add_u32 s40, s40, s41")
    k.e(f"s_cmp_ge_u32 s40, {ntiles}")
    k.e(f"s_cbranch_scc1 {end}")
    ACC = 64
    WB = 128
    XB = 160
    SUM = 176
    PF = 4
    for i in range(NTW):
        k.e(f"s_add_u32 s41, s40, {i}")
        k.e(f"s_mul_i32 s{42+i}, s41, {TILEB}")
    k.e("v_and_b32 v2, 63, v0")
    k.e("v_lshlrev_b32 v4, 4, v2")
    k.e("v_and_b32 v3, 31, v0")
    k.e(f"v_mul_u32_u24 v5, {XPITCH}, v3")
    k.e("v_bfe_u32 v6, v0, 5, 1")
    k.e("v_lshlrev_b32 v6, 4, v6")
    k.e("v_add_u32 v5, v5, v6")
    k.e(f"v_add_u32 v7, {32*XPITCH}, v5")
    for i in range(4 * NTW * 2):
        k.e(f"v_mov_b32 v{ACC+ i*4 + 0}, 0")
        k.e(f"v_mov_b32 v{ACC+ i*4 + 1}, 0")
        k.e(f"v_mov_b32 v{ACC+ i*4 + 2}, 0")
        k.e(f"v_mov_b32 v{ACC+ i*4 + 3}, 0")
    if LN:
        for i in range(4):
            k.e(f"v_mov_b32 v{SUM+i}, 0")
        k.e("v_mov_b32 v180, 0x3f803f80")

    def acc(i, tt):
        return ACC + (i * 2 + tt) * 16

    def mainloop(vtype):
        def wload(ks):
            for i in range(NTW):
                k.vm(f"Wk{ks}", f"buffer_load_dwordx4 v[{WB+((ks%PF)*NTW+i)*4}:{WB+((ks%PF)*NTW+i)*4+3}], v4, s[12:15], s{42+i} offen")
            for i in range(NTW):
                k.e(f"s_add_u32 s{42+i}, s{42+i}, 1024")

        def xload(ks):
            k.lg(f"Xk{ks}", f"ds_read_b128 v[{XB+(ks%2)*8}:{XB+(ks%2)*8+3}], v5 offset:{ks*32}")
            k.lg(f"Xk{ks}", f"ds_read_b128 v[{XB+(ks%2)*8+4}:{XB+(ks%2)*8+7}], v7 offset:{ks*32}")
        for ks in range(PF):
            wload(ks)
        xload(0)
        for ks in range(40):
            if ks + PF < 40:
                pass
            if ks + 1 < 40:
                xload(ks + 1)
            k.wait(vm=f"Wk{ks}", lg=f"Xk{ks}")
            for i in range(NTW):
                for tt in range(2):
                    w = WB + ((ks % PF) * NTW + i) * 4
                    x = XB + (ks % 2) * 8 + tt * 4
                    a = acc(i, tt)
                    if vtype:
                        k.e(f"v_mfma_f32_32x32x16_bf16 v[{a}:{a+15}], v[{x}:{x+3}], v[{w}:{w+3}], v[{a}:{a+15}]")
                    else:
                        k.e(f"v_mfma_f32_32x32x16_bf16 v[{a}:{a+15}], v[{w}:{w+3}], v[{x}:{x+3}], v[{a}:{a+15}]")
            if LN:
                for tt in range(2):
                    for r in range(4):
                        x = XB + (ks % 2) * 8 + tt * 4 + r
                        k.e(f"v_dot2c_f32_bf16 v{SUM+tt}, v{x}, v180")
                        k.e(f"v_dot2c_f32_bf16 v{SUM+2+tt}, v{x}, v{x}")
            if ks + PF < 40:
                wload(ks + PF)
        k.n(12)

    def stats():
        for j in range(4):
            k.e(f"v_mov_b32 v186, v{SUM+j}")
            k.n(2)
            k.e(f"v_permlane32_swap_b32 v{SUM+j}, v186")
            k.e(f"v_add_f32 v{SUM+j}, v{SUM+j}, v186")
        k.e("s_mov_b32 s44, 0x%08x" % f32bits(1.0 / 640))
        k.e("s_mov_b32 s45, 0x%08x" % f32bits(1e-5))
        for tt in range(2):
            k.e(f"v_mul_f32 v186, s44, v{SUM+tt}")
            k.e(f"v_mul_f32 v187, s44, v{SUM+2+tt}")
            k.e("v_fma_f32 v187, -v186, v186, v187")
            k.e("v_add_f32 v187, s45, v187")
            k.e(f"v_rsq_f32 v{181+tt}, v187")
            k.n(1)
            k.e(f"v_mul_f32 v{183+tt}, v{181+tt}, v186")

    def epi_qk(i, Tsreg, img, scale, limit):
        k.e("v_bfe_u32 v8, v0, 5, 1")
        k.e("v_lshlrev_b32 v8, 2, v8")
        k.e("v_and_b32 v9, 31, v0")
        k.e(f"s_lshl_b32 s46, s{Tsreg}, 5")
        k.e("v_add_u32 v8, s46, v8")
        k.e("s_mov_b32 s47, 0x%08x" % f32bits(scale))
        for g in range(4):
            k.e(f"v_add_u32 v10, {8*g}, v8")
            k.e("v_lshlrev_b32 v11, 2, v10")
            k.vm(f"CS{g}", f"buffer_load_dwordx4 v[{12+4*g}:{15+4*g}], v11, s[16:19], 0 offen")
        for tt in range(2):
            k.e(f"v_mul_f32 v28, s47, v{181+tt}")
            k.e(f"v_mul_f32 v29, s47, v{183+tt}")
            a = acc(i, tt)
            k.e("s_lshl_b32 s48, s32, 1")
            k.e(f"s_add_u32 s48, s48, {tt}")
            k.e("s_lshl_b32 s48, s48, 11")
            for g in range(4):
                k.wait(vm=f"CS{g}")
                k.e(f"v_add_u32 v10, {8*g}, v8")
                k.e("v_mul_u32_u24 v11, 3277, v10")
                k.e("v_lshrrev_b32 v11, 16, v11")
                k.e("v_mul_u32_u24 v30, 20, v11")
                k.e("v_sub_u32 v30, v10, v30")
                k.e("v_lshrrev_b32 v30, 2, v30")
                k.e("v_lshlrev_b32 v11, 17, v11")
                k.e("v_lshlrev_b32 v31, 4, v9")
                k.e("v_add3_u32 v11, v11, v31, s48")
                k.e("v_lshrrev_b32 v31, 2, v30")
                k.e("v_lshl_add_u32 v11, v31, 10, v11")
                k.e("v_bfe_u32 v31, v30, 1, 1")
                k.e("v_lshl_add_u32 v11, v31, 9, v11")
                k.e("v_and_b32 v31, 1, v30")
                k.e("v_lshl_add_u32 v11, v31, 3, v11")
                for r in range(4):
                    k.e(f"v_mul_f32 v{32+r}, v29, v{12+4*g+r}")
                    k.e(f"v_fma_f32 v{32+r}, v28, v{a+4*g+r}, -v{32+r}")
                k.e("v_cvt_pk_bf16_f32 v36, v32, v33")
                k.e("v_cvt_pk_bf16_f32 v37, v34, v35")
                if limit is not None:
                    k.e(f"v_cmp_gt_u32 vcc, {limit}, v10")
                    k.e("s_and_saveexec_b64 s[50:51], vcc")
                k.vm("ST", f"buffer_store_dwordx2 v[36:37], v11, s[{img}:{img+3}], 0 offen")
                if limit is not None:
                    k.e("s_mov_b64 exec, s[50:51]")

    def epi_v(i, Tsreg, limit):
        k.e("s_lshl_b32 s46, s34, 9")
        k.e(f"s_add_u32 s46, s46, {XPANEL}")
        k.e("v_and_b32 v9, 31, v0")
        k.e("v_lshlrev_b32 v10, 2, v9")
        k.e("v_add_u32 v10, s46, v10")
        for tt in range(2):
            k.lg("SW", f"ds_write_b32 v10, v{181+tt} offset:{tt*256}")
            k.lg("SW", f"ds_write_b32 v10, v{183+tt} offset:{tt*256+128}")
        k.e(f"s_lshl_b32 s47, s{Tsreg}, 5")
        k.e("v_add_u32 v10, s47, v9")
        k.e("v_lshlrev_b32 v11, 2, v10")
        k.vm("CSV", "buffer_load_dword v12, v11, s[16:19], 0 offen")
        k.e("v_mul_u32_u24 v11, 3277, v10")
        k.e("v_lshrrev_b32 v11, 16, v11")
        k.e("v_mul_u32_u24 v13, 20, v11")
        k.e("v_sub_u32 v13, v10, v13")
        k.e("v_lshlrev_b32 v11, 17, v11")
        k.e("v_lshl_add_u32 v11, v13, 4, v11")
        k.e("v_bfe_u32 v13, v0, 5, 1")
        k.e("v_lshl_add_u32 v11, v13, 9, v11")
        k.e("v_lshlrev_b32 v13, 4, v13")
        k.e("v_add_u32 v13, s46, v13")
        k.wait(lg="SW")
        for tt in range(2):
            for g in range(4):
                k.lg(f"SR{tt}{g}", f"ds_read_b128 v[{16+8*g}:{19+8*g}], v13 offset:{tt*256+32*g}")
                k.lg(f"SR{tt}{g}", f"ds_read_b128 v[{20+8*g}:{23+8*g}], v13 offset:{tt*256+128+32*g}")
            a = acc(i, tt)
            k.e("s_lshl_b32 s48, s32, 1")
            k.e(f"s_add_u32 s48, s48, {tt}")
            k.e("s_lshl_b32 s48, s48, 11")
            k.wait(vm="CSV")
            for g in range(4):
                k.wait(lg=f"SR{tt}{g}")
                for r in range(4):
                    k.e(f"v_mul_f32 v48, v{20+8*g+r}, v12")
                    k.e(f"v_fma_f32 v{a+4*g+r}, v{16+8*g+r}, v{a+4*g+r}, -v48")
            for r in range(8):
                k.e(f"v_cvt_pk_bf16_f32 v{50+r}, v{a+2*r}, v{a+2*r+1}")
            if limit is not None:
                k.e("v_and_b32 v9, 31, v0")
                k.e(f"v_cmp_gt_u32 vcc, {limit}, v9")
                k.e("s_and_saveexec_b64 s[50:51], vcc")
            k.vm("ST", "buffer_store_dwordx4 v[50:53], v11, s[28:31], s48 offen")
            k.vm("ST", "buffer_store_dwordx4 v[54:57], v11, s[28:31], s48 offen offset:1024")
            if limit is not None:
                k.e("s_mov_b64 exec, s[50:51]")

    def epi_out(i):
        k.e("v_bfe_u32 v8, v0, 5, 1")
        k.e("v_lshlrev_b32 v8, 3, v8")
        k.e("v_and_b32 v9, 31, v0")
        k.e(f"v_mul_u32_u24 v9, {ROWB}, v9")
        k.e("v_add_u32 v8, v8, v9")
        k.e("s_lshl_b32 s46, s40, 6")
        k.e("s_add_u32 s46, s46, s35")
        k.e(f"v_add_u32 v9, {32*ROWB}, v8")
        for tt in range(2):
            for g in range(4):
                k.vm(f"R{tt}{g}", f"buffer_load_dwordx2 v[{12+2*(tt*4+g)}:{13+2*(tt*4+g)}], v{8+tt}, s[20:23], s46 offen offset:{16*g}")
        for tt in range(2):
            a = acc(i, tt)
            for g in range(4):
                k.wait(vm=f"R{tt}{g}")
                rr = 12 + 2 * (tt * 4 + g)
                k.e(f"v_lshlrev_b32 v32, 16, v{rr}")
                k.e(f"v_and_b32 v33, 0xffff0000, v{rr}")
                k.e(f"v_lshlrev_b32 v34, 16, v{rr+1}")
                k.e(f"v_and_b32 v35, 0xffff0000, v{rr+1}")
                for r in range(4):
                    k.e(f"v_add_f32 v{32+r}, v{32+r}, v{a+4*g+r}")
                k.e("v_cvt_pk_bf16_f32 v36, v32, v33")
                k.e("v_cvt_pk_bf16_f32 v37, v34, v35")
                k.vm("ST", f"buffer_store_dwordx2 v[36:37], v{8+tt}, s[24:27], s46 offen offset:{16*g}")

    if kind == "OUT":
        if resid[0] == "in":
            srd(k, 20, 36, 0, XBYTES)
        else:
            srd(k, 20, 4, resid[1], XBYTES)
        if dst[0] == "out":
            srd(k, 24, 38, 0, XBYTES)
        else:
            srd(k, 24, 4, dst[1], XBYTES)
        mainloop(False)
        epi_out(0)
    else:
        cs = CS_A if kind == "A1" else CS_B
        srd(k, 16, 4, cs, (704 if kind == "A1" else 1920) * 4)
        srd(k, 20, 4, QIMG, IMGB)
        srd(k, 24, 4, KIMG, IMGB)
        srd(k, 28, 4, VIMG, IMGB)
        vstart = 21 if kind == "A1" else 40
        kstart = 20
        lv = f"L_{name}_vtype"
        k.e(f"s_cmp_ge_u32 s40, {vstart}")
        k.e(f"s_cbranch_scc1 {lv}")
        mainloop(False)
        stats()
        lk = f"L_{name}_ktype"
        k.e(f"s_cmp_ge_u32 s40, {kstart}")
        k.e(f"s_cbranch_scc1 {lk}")
        for i in range(NTW):
            k.e(f"s_add_u32 s49, s40, {i}")
            epi_qk(i, 49, 20, QSCALE, None)
        k.e(f"s_branch {end}")
        k.label(lk)
        for i in range(NTW):
            if kind == "A1":
                k.e("s_mov_b32 s49, 20")
                epi_qk_a1k(k, acc(i, 0), acc(i, 1))
            else:
                k.e(f"s_add_u32 s49, s40, {i - kstart}")
                epi_qk_b1k(k, i, acc)
        k.e(f"s_branch {end}")
        k.label(lv)
        mainloop(True)
        stats()
        for i in range(NTW):
            if kind == "A1":
                epi_v_generic(k, acc(i, 0), acc(i, 1), csoff=672, nbase=0, limit=20)
            else:
                k.e(f"s_add_u32 s49, s40, {i - vstart}")
                epi_v_generic(k, acc(i, 0), acc(i, 1), csoff=None, nbase=None, limit=None)
    k.label(end)
    k.e("s_endpgm")
    return k


def _qk_store(k, a_list, n_sec_reg, cs_base_elems, img, scale, limit):
    k.e("v_bfe_u32 v8, v0, 5, 1")
    k.e("v_lshlrev_b32 v8, 2, v8")
    k.e("v_and_b32 v9, 31, v0")
    k.e(f"v_add_u32 v8, s{n_sec_reg}, v8")
    k.e("s_mov_b32 s47, 0x%08x" % f32bits(scale))
    for g in range(4):
        k.e(f"v_add_u32 v10, {8*g+cs_base_elems}, v8")
        k.e("v_lshlrev_b32 v11, 2, v10")
        k.vm(f"CS{g}", f"buffer_load_dwordx4 v[{12+4*g}:{15+4*g}], v11, s[16:19], 0 offen")
    for tt in range(2):
        k.e(f"v_mul_f32 v28, s47, v{181+tt}")
        k.e(f"v_mul_f32 v29, s47, v{183+tt}")
        a = a_list[tt]
        k.e("s_lshl_b32 s48, s32, 1")
        k.e(f"s_add_u32 s48, s48, {tt}")
        k.e("s_lshl_b32 s48, s48, 11")
        for g in range(4):
            k.wait(vm=f"CS{g}")
            k.e(f"v_add_u32 v10, {8*g}, v8")
            k.e("v_mul_u32_u24 v11, 3277, v10")
            k.e("v_lshrrev_b32 v11, 16, v11")
            k.e("v_mul_u32_u24 v30, 20, v11")
            k.e("v_sub_u32 v30, v10, v30")
            k.e("v_lshrrev_b32 v30, 2, v30")
            k.e("v_lshlrev_b32 v11, 17, v11")
            k.e("v_lshlrev_b32 v31, 4, v9")
            k.e("v_add3_u32 v11, v11, v31, s48")
            k.e("v_lshrrev_b32 v31, 2, v30")
            k.e("v_lshl_add_u32 v11, v31, 10, v11")
            k.e("v_bfe_u32 v31, v30, 1, 1")
            k.e("v_lshl_add_u32 v11, v31, 9, v11")
            k.e("v_and_b32 v31, 1, v30")
            k.e("v_lshl_add_u32 v11, v31, 3, v11")
            for r in range(4):
                k.e(f"v_mul_f32 v{32+r}, v29, v{12+4*g+r}")
                k.e(f"v_fma_f32 v{32+r}, v28, v{a+4*g+r}, -v{32+r}")
            k.e("v_cvt_pk_bf16_f32 v36, v32, v33")
            k.e("v_cvt_pk_bf16_f32 v37, v34, v35")
            if limit is not None:
                k.e(f"v_cmp_gt_u32 vcc, {limit}, v10")
                k.e("s_and_saveexec_b64 s[50:51], vcc")
            k.vm("ST", f"buffer_store_dwordx2 v[36:37], v11, s[{img}:{img+3}], 0 offen")
            if limit is not None:
                k.e("s_mov_b64 exec, s[50:51]")


def epi_qk_a1k(k, a0, a1):
    k.e("s_mov_b32 s52, 0")
    _qk_store(k, [a0, a1], 52, 640, 24, 1.0, 20)


def epi_qk_b1k(k, i, acc):
    k.e("s_lshl_b32 s52, s49, 5")
    _qk_store(k, [acc(i, 0), acc(i, 1)], 52, 640, 24, 1.0, None)


def epi_v_generic(k, a0, a1, csoff, nbase, limit):
    k.e("s_lshl_b32 s46, s34, 9")
    k.e(f"s_add_u32 s46, s46, {XPANEL}")
    k.e("v_and_b32 v9, 31, v0")
    k.e("v_lshlrev_b32 v10, 2, v9")
    k.e("v_add_u32 v10, s46, v10")
    for tt in range(2):
        k.lg("SW", f"ds_write_b32 v10, v{181+tt} offset:{tt*256}")
        k.lg("SW", f"ds_write_b32 v10, v{183+tt} offset:{tt*256+128}")
    if nbase is None:
        k.e("s_lshl_b32 s47, s49, 5")
        k.e("v_add_u32 v10, s47, v9")
        csb = 1280
    else:
        k.e("v_mov_b32 v10, v9")
        csb = csoff
    k.e(f"v_add_u32 v11, {csb}, v10")
    k.e("v_lshlrev_b32 v11, 2, v11")
    k.vm("CSV", "buffer_load_dword v12, v11, s[16:19], 0 offen")
    k.e("v_mul_u32_u24 v11, 3277, v10")
    k.e("v_lshrrev_b32 v11, 16, v11")
    k.e("v_mul_u32_u24 v13, 20, v11")
    k.e("v_sub_u32 v13, v10, v13")
    k.e("v_lshlrev_b32 v11, 17, v11")
    k.e("v_lshl_add_u32 v11, v13, 4, v11")
    k.e("v_bfe_u32 v13, v0, 5, 1")
    k.e("v_lshl_add_u32 v11, v13, 9, v11")
    k.e("v_lshlrev_b32 v13, 4, v13")
    k.e("v_add_u32 v13, s46, v13")
    k.wait(lg="SW")
    for tt in range(2):
        for g in range(4):
            k.lg(f"SR{tt}{g}", f"ds_read_b128 v[{16+8*g}:{19+8*g}], v13 offset:{tt*256+32*g}")
            k.lg(f"SR{tt}{g}", f"ds_read_b128 v[{20+8*g}:{23+8*g}], v13 offset:{tt*256+128+32*g}")
        a = [a0, a1][tt]
        k.e("s_lshl_b32 s48, s32, 1")
        k.e(f"s_add_u32 s48, s48, {tt}")
        k.e("s_lshl_b32 s48, s48, 11")
        k.wait(vm="CSV")
        for g in range(4):
            k.wait(lg=f"SR{tt}{g}")
            for r in range(4):
                k.e(f"v_mul_f32 v48, v{20+8*g+r}, v12")
                k.e(f"v_fma_f32 v{a+4*g+r}, v{16+8*g+r}, v{a+4*g+r}, -v48")
        for r in range(8):
            k.e(f"v_cvt_pk_bf16_f32 v{50+r}, v{a+2*r}, v{a+2*r+1}")
        if limit is not None:
            k.e(f"v_cmp_gt_u32 vcc, {limit}, v9")
            k.e("s_and_saveexec_b64 s[50:51], vcc")
        k.vm("ST", "buffer_store_dwordx4 v[50:53], v11, s[28:31], s48 offen")
        k.vm("ST", "buffer_store_dwordx4 v[54:57], v11, s[28:31], s48 offen offset:1024")
        if limit is not None:
            k.e("s_mov_b64 exec, s[50:51]")


ATT_A_LDS = 2 * 32768
ATT_B_LDS = 16 * 4096


def attn_common_regs():
    return dict(Q=8, S0=16, S1=32, O=48, KF=64, VF=80, P=96, M=104, T=106, STG=112)


def emit_q_load(k, R):
    Q = R["Q"]
    k.e("s_lshl_b32 s22, s20, 6")
    k.e("s_add_u32 s22, s22, s21")
    k.e("s_lshl_b32 s22, s22, 11")
    k.e("v_and_b32 v1, 63, v0")
    k.e("v_lshlrev_b32 v2, 4, v1")
    k.vm("Q", f"buffer_load_dwordx4 v[{Q}:{Q+3}], v2, s[8:11], s22 offen")
    k.vm("Q", f"buffer_load_dwordx2 v[{Q+4}:{Q+5}], v2, s[8:11], s22 offen offset:1024")
    k.e(f"v_mov_b32 v{Q+6}, 0")
    k.e(f"v_mov_b32 v{Q+7}, 0")


def emit_q_fix(k, R):
    Q = R["Q"]
    k.wait(vm="Q")
    k.e("v_cmp_gt_u32 vcc, 32, v1")
    k.n(2)
    k.e(f"v_cndmask_b32 v{Q+4}, 0, v{Q+4}, vcc")
    k.e(f"v_cndmask_b32 v{Q+5}, 0, v{Q+5}, vcc")


def emit_tile_reads(k, R, buf, tag, kaddr, k1addr, vaddr, off):
    KF, VF = R["KF"] + buf * 8, R["VF"] + buf * 8
    k.lg(tag, f"ds_read_b128 v[{KF}:{KF+3}], v{kaddr} offset:{off}")
    k.lg(tag, f"ds_read_b64 v[{KF+4}:{KF+5}], v{k1addr} offset:{off+1024}")
    k.lg(tag + "v", f"ds_read_b128 v[{VF}:{VF+3}], v{vaddr} offset:{off}")
    k.lg(tag + "v", f"ds_read_b128 v[{VF+4}:{VF+7}], v{vaddr} offset:{off+1024}")


def emit_qk(k, R, buf, Sreg):
    KF, Q = R["KF"] + buf * 8, R["Q"]
    k.e(f"v_mfma_f32_32x32x16_bf16 v[{Sreg}:{Sreg+15}], v[{KF}:{KF+3}], v[{Q}:{Q+3}], 0")
    k.e(f"v_mfma_f32_32x32x16_bf16 v[{Sreg}:{Sreg+15}], v[{KF+4}:{KF+7}], v[{Q+4}:{Q+7}], v[{Sreg}:{Sreg+15}]")


def emit_softmax_pv(k, R, buf, Sreg, tagv):
    O, P, M, T = R["O"], R["P"], R["M"], R["T"]
    VF = R["VF"] + buf * 8
    k.e(f"v_max3_f32 v{T}, v{Sreg}, v{Sreg+1}, v{Sreg+2}")
    for r in range(3, 15, 2):
        k.e(f"v_max3_f32 v{T}, v{T}, v{Sreg+r}, v{Sreg+r+1}")
    k.e(f"v_max_f32 v{T}, v{T}, v{Sreg+15}")
    k.e(f"v_mov_b32 v{T+1}, v{T}")
    k.n(2)
    k.e(f"v_permlane32_swap_b32 v{T}, v{T+1}")
    k.e(f"v_max3_f32 v{T}, v{T}, v{T+1}, v{M}")
    k.e(f"v_sub_f32 v{T+1}, v{M}, v{T}")
    k.e(f"v_exp_f32 v{T+1}, v{T+1}")
    k.e(f"v_mov_b32 v{M}, v{T}")
    k.e(f"v_sub_f32 v{M+1}, 0, v{T}")
    k.e(f"v_mov_b32 v{T}, v{T+1}")
    k.e(f"v_mov_b32 v{T+3}, v{M+1}")
    k.e(f"v_mov_b32 v{T+2}, v{M+1}")
    for r in range(0, 16, 2):
        k.e(f"v_pk_add_f32 v[{Sreg+r}:{Sreg+r+1}], v[{Sreg+r}:{Sreg+r+1}], v[{T+2}:{T+3}]")
    for r in range(0, 12, 2):
        k.e(f"v_pk_mul_f32 v[{O+r}:{O+r+1}], v[{O+r}:{O+r+1}], v[{T}:{T+1}]")
    for r in range(16):
        k.e(f"v_exp_f32 v{Sreg+r}, v{Sreg+r}")
    k.n(1)
    for r in range(8):
        k.e(f"v_cvt_pk_bf16_f32 v{P+r}, v{Sreg+2*r}, v{Sreg+2*r+1}")
    k.wait(lg=tagv)
    k.n(1)
    k.e(f"v_mfma_f32_32x32x16_bf16 v[{O}:{O+15}], v[{VF}:{VF+3}], v[{P}:{P+3}], v[{O}:{O+15}]")
    k.e(f"v_mfma_f32_32x32x16_bf16 v[{O}:{O+15}], v[{VF+4}:{VF+7}], v[{P+4}:{P+7}], v[{O}:{O+15}]")


def emit_attn_epilogue(k, R):
    O, T = R["O"], R["T"]
    k.n(12)
    k.e(f"v_mov_b32 v{T}, v{O+8}")
    k.e(f"v_mov_b32 v{T+1}, v{O+8}")
    k.n(2)
    k.e(f"v_permlane32_swap_b32 v{T}, v{T+1}")
    k.e(f"v_rcp_f32 v{T+1}, v{T+1}")
    k.n(1)
    for r in range(12):
        k.e(f"v_mul_f32 v{O+r}, v{O+r}, v{T+1}")
    k.e("v_and_b32 v2, 31, v0")
    k.e("s_lshl_b32 s22, s21, 5")
    k.e("v_add_u32 v2, s22, v2")
    k.e(f"v_mul_u32_u24 v2, {ROWB}, v2")
    k.e("v_bfe_u32 v3, v0, 5, 1")
    k.e("v_lshl_add_u32 v2, v3, 3, v2")
    k.e("s_mul_i32 s22, s20, 40")
    for g in range(3):
        k.e(f"v_cvt_pk_bf16_f32 v{T}, v{O+4*g}, v{O+4*g+1}")
        k.e(f"v_cvt_pk_bf16_f32 v{T+1}, v{O+4*g+2}, v{O+4*g+3}")
        if g == 2:
            k.e("v_cmp_gt_u32 vcc, 32, v1")
            k.e("s_and_saveexec_b64 s[24:25], vcc")
        k.vm("ST", f"buffer_store_dwordx2 v[{T}:{T+1}], v2, s[16:19], s22 offen offset:{16*g}")
    k.e("s_mov_b64 exec, s[24:25]")


def emit_stage_issue(k, R, ksrd_off_sreg, n_per_mat):
    pass


def gen_attnA(name):
    R = attn_common_regs()
    k = Kern(name)
    k.label(name)
    end = f"L_{name}_end"
    k.e("s_cmp_ge_u32 s2, 256")
    k.e(f"s_cbranch_scc1 {end}")
    k.e(f"s_load_dwordx2 s[4:5], s[0:1], {KA_WS}")
    k.e("v_lshrrev_b32 v1, 6, v0")
    k.n(1)
    k.e("v_readfirstlane_b32 s23, v1")
    k.e("s_lshr_b32 s20, s2, 3")
    k.e("s_and_b32 s21, s2, 7")
    k.e("s_lshl_b32 s21, s21, 3")
    k.e("s_add_u32 s21, s21, s23")
    k.wait_lg0()
    srd(k, 8, 4, QIMG, IMGB)
    srd(k, 12, 4, KIMG, 2 * IMGB)
    srd(k, 16, 4, OBUF, XBYTES)
    emit_q_load(k, R)
    STG = R["STG"]
    k.e("v_lshlrev_b32 v4, 4, v0")
    k.e("v_and_b32 v5, 31, v0")
    k.e("v_cmp_eq_u32 s[26:27], 20, v5")
    k.e("v_mov_b32 v5, 0x3f803f80")

    def stage_load(c):
        k.e(f"s_mov_b32 s28, {c*16384}")
        k.e(f"s_mov_b32 s29, {VIMG-KIMG + c*16384}")
        for i in range(2):
            k.vm(f"G{c}", f"buffer_load_dwordx4 v[{STG+4*i}:{STG+4*i+3}], v4, s[12:15], s28 offen offset:0" if i == 0 else
                 f"buffer_load_dwordx4 v[{STG+4*i}:{STG+4*i+3}], v6, s[12:15], s28 offen")
        for i in range(2):
            k.vm(f"G{c}", f"buffer_load_dwordx4 v[{STG+8+4*i}:{STG+8+4*i+3}], {'v4' if i==0 else 'v6'}, s[12:15], s29 offen")

    def stage_write(c):
        base = (c % 2) * 32768
        k.wait(vm=f"G{c}")
        for r in range(8):
            k.e(f"v_cndmask_b32 v{STG+8+r}, v{STG+8+r}, v5, s[26:27]")
        k.lg("SW", f"ds_write_b128 v4, v[{STG}:{STG+3}] offset:{base}")
        k.lg("SW", f"ds_write_b128 v4, v[{STG+4}:{STG+7}] offset:{base+8192}")
        k.lg("SW", f"ds_write_b128 v4, v[{STG+8}:{STG+11}] offset:{base+16384}")
        k.lg("SW", f"ds_write_b128 v4, v[{STG+12}:{STG+15}] offset:{base+16384+8192}")

    k.e("v_add_u32 v6, 8192, v4")
    stage_load(0)
    emit_q_fix(k, R)
    k.e("v_and_b32 v1, 63, v0")
    k.e("v_lshlrev_b32 v7, 4, v1")
    k.e("v_and_b32 v3, 31, v0")
    k.e("v_lshlrev_b32 v3, 4, v3")
    k.e("v_add_u32 v2, 16384, v7")
    KF = R["KF"]
    for b in range(2):
        k.e(f"v_mov_b32 v{KF+b*8+6}, 0")
        k.e(f"v_mov_b32 v{KF+b*8+7}, 0")
    for r in range(16):
        k.e(f"v_mov_b32 v{R['O']+r}, 0")
    k.e(f"v_mov_b32 v{R['M']}, 0xf149f2ca")
    stage_write(0)
    k.wait_lg0()
    k.e("s_barrier")
    NCH = 8
    for c in range(NCH):
        base = (c % 2) * 32768
        if c + 1 < NCH:
            stage_load(c + 1)
        emit_tile_reads(k, R, 0, "T0", 7, 3, 2, base)
        k.wait(lg="T0")
        emit_qk(k, R, 0, R["S0"])
        for t in range(8):
            Sc = R["S0"] if t % 2 == 0 else R["S1"]
            Sn = R["S1"] if t % 2 == 0 else R["S0"]
            if t < 7:
                emit_tile_reads(k, R, (t + 1) % 2, f"T{t+1}", 7, 3, 2, base + (t + 1) * 2048)
                k.wait(lg=f"T{t+1}")
                emit_qk(k, R, (t + 1) % 2, Sn)
            else:
                k.n(8)
            emit_softmax_pv(k, R, t % 2, Sc, f"T{t}v")
        if c + 1 < NCH:
            stage_write(c + 1)
            k.wait_lg0()
            k.e("s_barrier")
    emit_attn_epilogue(k, R)
    k.label(end)
    k.e("s_endpgm")
    return k


def gen_attnB(name):
    R = attn_common_regs()
    k = Kern(name)
    k.label(name)
    end = f"L_{name}_end"
    k.e("s_cmp_ge_u32 s2, 256")
    k.e(f"s_cbranch_scc1 {end}")
    k.e(f"s_load_dwordx2 s[4:5], s[0:1], {KA_WS}")
    k.e("v_lshrrev_b32 v1, 6, v0")
    k.n(1)
    k.e("v_readfirstlane_b32 s23, v1")
    k.e("s_lshr_b32 s20, s2, 3")
    k.e("s_and_b32 s30, s2, 7")
    k.e("s_lshl_b32 s21, s30, 3")
    k.e("s_add_u32 s21, s21, s23")
    k.wait_lg0()
    srd(k, 8, 4, QIMG, IMGB)
    srd(k, 12, 4, KIMG, 2 * IMGB)
    srd(k, 16, 4, OBUF, XBYTES)
    emit_q_load(k, R)
    STG = R["STG"]
    k.e("v_lshlrev_b32 v4, 4, v0")
    k.e("s_lshl_b32 s28, s20, 17")
    k.e("s_lshl_b32 s29, s30, 14")
    k.e("s_add_u32 s28, s28, s29")
    k.e("v_and_b32 v5, 31, v0")
    k.e("v_cmp_eq_u32 s[26:27], 20, v5")
    k.e("v_mov_b32 v5, 0x3f803f80")
    for half in range(2):
        skip = f"L_{name}_skip{half}"
        if half == 0:
            k.e("s_cmp_eq_u32 s30, 0")
            k.e(f"s_cbranch_scc1 {skip}")
            k.e("s_sub_u32 s29, s28, 16384")
        else:
            k.e("s_mov_b32 s29, s28")
        k.e(f"s_add_u32 s31, s29, {VIMG-KIMG}")
        k.vm("G", f"buffer_load_dwordx4 v[{STG}:{STG+3}], v4, s[12:15], s29 offen")
        k.vm("G", f"buffer_load_dwordx4 v[{STG+4}:{STG+7}], v4, s[12:15], s29 offen offset:0")
        k.lines.pop()
        k.vmq.pop()
        k.e("v_add_u32 v6, 8192, v4")
        k.vm("G", f"buffer_load_dwordx4 v[{STG+4}:{STG+7}], v6, s[12:15], s29 offen")
        k.vm("G", f"buffer_load_dwordx4 v[{STG+8}:{STG+11}], v4, s[12:15], s31 offen")
        k.vm("G", f"buffer_load_dwordx4 v[{STG+12}:{STG+15}], v6, s[12:15], s31 offen")
        k.wait(vm="G")
        for r in range(8):
            k.e(f"v_cndmask_b32 v{STG+8+r}, v{STG+8+r}, v5, s[26:27]")
        base = half * 16384
        k.lg("SW", f"ds_write_b128 v4, v[{STG}:{STG+3}] offset:{base}")
        k.lg("SW", f"ds_write_b128 v4, v[{STG+4}:{STG+7}] offset:{base+8192}")
        k.lg("SW", f"ds_write_b128 v4, v[{STG+8}:{STG+11}] offset:{32768+base}")
        k.lg("SW", f"ds_write_b128 v4, v[{STG+12}:{STG+15}] offset:{32768+base+8192}")
        k.wait_lg0()
        if half == 0:
            k.label(skip)
    emit_q_fix(k, R)
    k.e("v_and_b32 v1, 63, v0")
    k.e("v_lshlrev_b32 v7, 4, v1")
    k.e("s_lshl_b32 s28, s23, 11")
    k.e("v_add_u32 v7, s28, v7")
    k.e("v_and_b32 v3, 31, v0")
    k.e("v_lshlrev_b32 v3, 4, v3")
    k.e("v_add_u32 v3, s28, v3")
    k.e("v_add_u32 v2, 32768, v7")
    KF = R["KF"]
    for b in range(2):
        k.e(f"v_mov_b32 v{KF+b*8+6}, 0")
        k.e(f"v_mov_b32 v{KF+b*8+7}, 0")
    for r in range(16):
        k.e(f"v_mov_b32 v{R['O']+r}, 0")
    k.e(f"v_mov_b32 v{R['M']}, 0xf149f2ca")
    k.e("v_and_b32 v110, 31, v0")
    k.e("v_bfe_u32 v111, v0, 5, 1")
    k.e("v_lshlrev_b32 v111, 2, v111")
    k.e("v_sub_u32 v110, v110, v111")
    k.e("v_mov_b32 v111, 0xf149f2ca")
    k.e("s_barrier")
    for t in range(9):
        skip = f"L_{name}_t{t}"
        k.e(f"s_cmp_lt_u32 s21, {8-t}")
        k.e(f"s_cbranch_scc1 {skip}")
        emit_tile_reads(k, R, 0, "T", 7, 3, 2, t * 2048)
        k.wait(lg="T")
        emit_qk(k, R, 0, R["S0"])
        k.n(12)
        Sreg = R["S0"]
        if t == 0:
            for r in range(16):
                il = 8 * (r // 4) + r % 4
                k.e(f"v_cmp_gt_i32 vcc, {il}, v110")
                k.n(1)
                k.e(f"v_cndmask_b32 v{Sreg+r}, v111, v{Sreg+r}, vcc")
        if t == 8:
            for r in range(16):
                il = 8 * (r // 4) + r % 4
                k.e(f"v_cmp_le_i32 vcc, {il}, v110")
                k.n(1)
                k.e(f"v_cndmask_b32 v{Sreg+r}, v111, v{Sreg+r}, vcc")
        emit_softmax_pv(k, R, 0, Sreg, "Tv")
        k.label(skip)
    emit_attn_epilogue(k, R)
    k.label(end)
    k.e("s_endpgm")
    return k


def build():
    kernels = []
    launches = []

    def add(kern, grid, block, lds, vgpr=256):
        if kern.name not in [kk.name for kk, _ in kernels]:
            kernels.append((kern, vgpr))
        launches.append((kern.name, grid, block, lds))
    add(gen_prep(), 31, 256, 0)
    xin = ("in", KA_AX)
    xs = [xin, ("ws", X1), ("ws", X2), ("ws", X3)]
    dsts = [("ws", X1), ("ws", X2), ("ws", X3), ("out",)]
    for layer in range(4):
        x = xs[layer]
        if layer % 2 == 0:
            add(gen_gemm(f"a1_{layer}_kernel", "A1", x), 32 * 6, 256, GEMM_LDS)
            add(gen_attnA("attna_kernel"), 256, 512, ATT_A_LDS)
            add(gen_gemm(f"outa_{layer}_kernel", "OUT", ("ws", OBUF), resid=(x[0], x[1], WOA_F), dst=dsts[layer]), 32 * 5, 256, GEMM_LDS)
        else:
            add(gen_gemm(f"b1_{layer}_kernel", "B1", x), 32 * 8, 256, GEMM_LDS)
            add(gen_attnB("attnb_kernel"), 256, 512, ATT_B_LDS)
            add(gen_gemm(f"outb_{layer}_kernel", "OUT", ("ws", OBUF), resid=(x[0], x[1], WOB_F), dst=dsts[layer]), 32 * 5, 256, GEMM_LDS)
    return kernels, launches


HEADER = open("interleave_layers__grouped_kv_mqa__sliding_block__prompt.s.ref").read().split("\n")


def main():
    kernels, launches = build()
    out = []
    for line in HEADER:
        if line.startswith("; @launch") or not line.startswith(";"):
            break
        out.append(line)
    for name, grid, block, lds in launches:
        out.append(f"; @launch kernel={name} grid=({grid},1,1) block=({block},1,1) lds={lds}")
    out.append('.amdgcn_target "amdgcn-amd-amdhsa--gfx950"')
    out.append(".text")
    for kern, vg in kernels:
        out.append(f".globl {kern.name}")
        out.append(".p2align 8")
        out.append(f".type {kern.name},@function")
        out.append(kern.text())
    out.append('.section .rodata,"a"')
    for kern, vg in kernels:
        out.append(".p2align 6")
        out.append(f".amdhsa_kernel {kern.name}")
        out.append(f"  .amdhsa_next_free_vgpr {vg}")
        out.append("  .amdhsa_next_free_sgpr 102")
        out.append(f"  .amdhsa_accum_offset {vg}")
        out.append("  .amdhsa_group_segment_fixed_size 0")
        out.append("  .amdhsa_kernarg_size 88")
        out.append("  .amdhsa_user_sgpr_count 2")
        out.append("  .amdhsa_user_sgpr_kernarg_segment_ptr 1")
        out.append("  .amdhsa_system_sgpr_workgroup_id_x 1")
        out.append(".end_amdhsa_kernel")
    open("interleave_layers__grouped_kv_mqa__sliding_block__prompt.s", "w").write("\n".join(out) + "\n")


if __name__ == "__main__":
    main()
```
